```python
import torch

def _softmax(x, axis=-1):
    return torch.softmax(x, dim=axis)
def _gelu(x):
    return torch.nn.functional.gelu(x, approximate="tanh")
def _silu(x):
    return torch.nn.functional.silu(x)
def _sigmoid(x):
    return torch.sigmoid(x)
def _layernorm(x, axis=-1, eps=1e-5):
    m = x.mean(dim=axis, keepdim=True)
    v = x.var(dim=axis, keepdim=True, unbiased=False)
    return (x - m) / torch.sqrt(v + eps)
def _scatter_add(tgt, idx, src, axis=0):
    return tgt.clone().index_add_(axis, idx, src)
def _segment_sum(src, seg, n):
    out = torch.zeros((n,) + src.shape[1:], dtype=src.dtype)
    return out.index_add_(0, seg, src)
def _pad(x, pw):
    flat = tuple(v for pair in reversed(pw) for v in pair)
    return torch.nn.functional.pad(x, flat)

kernel_name = 'recurrent_scan__ssm_conv_s5__glu_gated_bilinear__prompt'

def setup_inputs():

    _w = (lambda a: (lambda t: t.to(torch.bfloat16) if t.is_floating_point() else t)(torch.as_tensor(a)))
    def _A_setup():
        B, S, D = 1, 2048, 576
        P = D
        Lambda_re = -0.5 * (lambda _x: torch.exp(torch.as_tensor(_x)))((lambda *s: torch.randn(*s, dtype=torch.bfloat16) * 0.8)(P))
        Lambda_im = (lambda *s: torch.randn(*s, dtype=torch.bfloat16) * 0.8)(P) * 1.0
        B_re = (lambda *s: torch.randn(*s, dtype=torch.bfloat16) * 1.6)(P, D) * (D ** -0.5)
        B_im = (lambda *s: torch.randn(*s, dtype=torch.bfloat16) * 1.6)(P, D) * (D ** -0.5)
        C_re = (lambda *s: torch.randn(*s, dtype=torch.bfloat16) * 1.6)(D, P) * (P ** -0.5)
        C_im = (lambda *s: torch.randn(*s, dtype=torch.bfloat16) * 1.6)(D, P) * (P ** -0.5)
        log_dt = (lambda *s: torch.randn(*s, dtype=torch.bfloat16) * 0.8)(P) * 0.3 - 2.0
        Dskip = (lambda *s: torch.randn(*s, dtype=torch.bfloat16) * 0.8)(D)
        return {
            "x": _w((lambda *s: torch.randn(*s, dtype=torch.bfloat16) * 0.05)(B, S, D)),
            "Lambda_re": _w(Lambda_re),
            "Lambda_im": _w(Lambda_im),
            "B_re": _w(B_re),
            "B_im": _w(B_im),
            "C_re": _w(C_re),
            "C_im": _w(C_im),
            "log_dt": _w(log_dt),
            "Dskip": _w(Dskip),
        }
    _A_in = _A_setup()

    def _B_setup():
        B, S, D, F = 1, 2048, 576, 4608
        return {
            "x": _w((lambda *s: torch.randn(*s, dtype=torch.bfloat16) * 0.05)(B, S, D)),
            "w_gate": _w((lambda *s: torch.randn(*s, dtype=torch.bfloat16) * 0.2)(D, F) * (D ** -0.5)),
            "w_up": _w((lambda *s: torch.randn(*s, dtype=torch.bfloat16) * 0.2)(D, F) * (D ** -0.5)),
            "w_down": _w((lambda *s: torch.randn(*s, dtype=torch.bfloat16) * 0.2)(F, D) * (F ** -0.5)),
        }
    _B_in = _B_setup()

    return {
        "A_x": _A_in["x"],
        "A_Lambda_re": _A_in["Lambda_re"],
        "A_Lambda_im": _A_in["Lambda_im"],
        "A_B_re": _A_in["B_re"],
        "A_B_im": _A_in["B_im"],
        "A_C_re": _A_in["C_re"],
        "A_C_im": _A_in["C_im"],
        "A_log_dt": _A_in["log_dt"],
        "A_Dskip": _A_in["Dskip"],
        "B_x": _B_in["x"],
        "B_w_gate": _B_in["w_gate"],
        "B_w_up": _B_in["w_up"],
        "B_w_down": _B_in["w_down"],
    }

def reference(A_x, A_Lambda_re, A_Lambda_im, A_B_re, A_B_im, A_C_re, A_C_im, A_log_dt, A_Dskip, B_x, B_w_gate, B_w_up, B_w_down):
    def _A_ref(x, Lambda_re, Lambda_im, B_re, B_im, C_re, C_im, log_dt, Dskip):
        Bsz, L, H = x.shape
        Lam = Lambda_re + 1j * Lambda_im
        Bmat = B_re + 1j * B_im
        Cmat = C_re + 1j * C_im
        dt = torch.exp(log_dt)
        Lam_bar = torch.exp(dt * Lam)
        B_bar = ((Lam_bar - 1.0) / Lam)[:, None] * Bmat
        Bu = torch.einsum("bld,pd->blp", x + 0j, B_bar)
        h = torch.zeros_like(Bu[:, 0, :])
        hs = []
        for t in range(L):
            h = Lam_bar[None, :] * h + Bu[:, t, :]
            hs.append(h)
        hseq = torch.stack(hs, 1)
        y = 2.0 * torch.einsum("blp,dp->bld", hseq, Cmat).real + x * Dskip[None, None, :]
        return y

    def _B_ref(x, w_gate, w_up, w_down):
        g = torch.einsum("bsd,df->bsf", x, w_gate)
        u = torch.einsum("bsd,df->bsf", x, w_up)
        h = g * u
        return torch.einsum("bsf,fd->bsd", h, w_down)

    x = A_x
    xn = _layernorm(x, axis=-1)
    s = _A_ref(xn, A_Lambda_re, A_Lambda_im, A_B_re, A_B_im, A_C_re, A_C_im, A_log_dt, A_Dskip)
    g = _silu(_B_ref(xn, B_w_gate, B_w_up, B_w_down))
    return x + s * g
```

```python
import sys, struct

NAME = "recurrent_scan__ssm_conv_s5__glu_gated_bilinear__prompt"
XN_OFF, XN_SZ = 0x0, 2359296
CP_OFF, CP_SZ = 0x280000, 1327104
BU_OFF, BU_SZ = 0x400000, 1048576
HO_OFF, HO_SZ = 0x500000, 147456
H2_OFF, H2_SZ = 0x600000, 23592960
TILE_STRIDE = 180 * 1024
TS_OFF = 0x2000000
TAG = 0x5EEDF00D


def f2u(x):
    return struct.unpack("<I", struct.pack("<f", x))[0]


class Asm:
    def __init__(self):
        self.L = []

    def __call__(self, s):
        for ln in s.split("\n"):
            ln = ln.strip()
            if ln:
                self.L.append(ln)

    def srd(self, d, base, size, off=0):
        if off:
            self(f"s_add_u32 s{d}, s{base}, {off}\ns_addc_u32 s{d+1}, s{base+1}, 0")
        else:
            self(f"s_mov_b32 s{d}, s{base}\ns_mov_b32 s{d+1}, s{base+1}")
        self(f"s_mov_b32 s{d+2}, {size}\ns_mov_b32 s{d+3}, 0x20000")

    def text(self):
        return "\n".join(self.L) + "\n"


def kernel_head(A, name):
    A(f".text\n.globl {name}\n.p2align 8\n.type {name},@function\n{name}:")


def kernel_desc(name, nv, na, ns):
    acc = (nv + 3) // 4 * 4
    return (f".amdhsa_kernel {name}\n.amdhsa_next_free_vgpr {acc + na if na else nv}\n.amdhsa_next_free_sgpr {ns}\n"
            f".amdhsa_accum_offset {acc}\n.amdhsa_group_segment_fixed_size 0\n.amdhsa_kernarg_size 128\n"
            ".amdhsa_user_sgpr_count 2\n.amdhsa_user_sgpr_kernarg_segment_ptr 1\n.amdhsa_system_sgpr_workgroup_id_x 1\n"
            ".end_amdhsa_kernel\n")


def stamp(A, opts, kidx, slot, wsreg, vt, cond_wave0=None):
    if not opts.get("stamp"):
        return
    A(f"s_memrealtime s[90:91]\ns_waitcnt lgkmcnt(0)")
    A(f"s_lshl_b32 s92, s2, 8\ns_add_u32 s92, s92, {TS_OFF + kidx * 0x20000 + slot * 4}")
    A(f"s_lshl_b32 s93, s3, 5\ns_add_u32 s92, s92, s93")
    A(f"v_mov_b32 v{vt}, s92\nv_mov_b32 v{vt+1}, s90")
    A(f"global_store_dword v{vt}, v{vt+1}, s[{wsreg}:{wsreg+1}]")


def gen_k0(A, opts):
    kernel_head(A, "k0_kernel")
    A("s_cmp_ge_u32 s2, 256\ns_cbranch_scc1 K0_end")
    A("s_load_dwordx2 s[4:5], s[0:1], 0\ns_load_dwordx4 s[8:11], s[0:1], 24\ns_load_dwordx4 s[12:15], s[0:1], 40\ns_load_dwordx2 s[6:7], s[0:1], 120")
    A("v_lshrrev_b32 v2, 6, v0\nv_and_b32 v1, 63, v0\nv_readfirstlane_b32 s3, v2")
    A("v_and_b32 v2, 15, v1\nv_lshrrev_b32 v3, 4, v1")
    A("s_and_b32 s52, s2, 127\ns_lshr_b32 s53, s2, 7")
    A("s_lshr_b32 s54, s52, 3\ns_lshl_b32 s54, s54, 7\ns_and_b32 s55, s52, 7\ns_lshl_b32 s55, s55, 2\ns_add_u32 s54, s54, s55")
    A("v_lshrrev_b32 v4, 2, v2\nv_lshlrev_b32 v4, 5, v4\nv_and_b32 v5, 3, v2\nv_add3_u32 v4, v4, v5, s54")
    A("v_mul_u32_u24 v4, 1152, v4\nv_lshl_add_u32 v4, v3, 4, v4")
    A("s_mul_i32 s56, s3, 192")
    A("s_lshl_b32 s57, s53, 5\ns_add_u32 s57, s57, 512\nv_add_u32 v5, s57, v2\nv_mul_u32_u24 v5, 1152, v5\nv_lshl_add_u32 v5, v3, 4, v5")
    A("s_add_u32 s58, s56, 18432")
    A("s_mul_i32 s59, s2, 6\ns_add_u32 s59, s59, s3\ns_and_b32 s60, s59, 3\ns_lshr_b32 s61, s59, 2")
    A("s_mul_i32 s62, s61, 1821\ns_lshr_b32 s62, s62, 16\ns_mul_i32 s63, s62, 36\ns_sub_u32 s63, s61, s63")
    A("s_lshl_b32 s62, s62, 6\ns_lshl_b32 s60, s60, 4\ns_add_u32 s62, s62, s60")
    A("v_add_u32 v6, s62, v2\nv_mul_u32_u24 v6, 1152, v6\nv_lshl_add_u32 v6, v3, 3, v6\ns_lshl_b32 s63, s63, 5")
    A("s_waitcnt lgkmcnt(0)")
    stamp(A, opts, 0, 0, 6, 60)
    A.srd(16, 4, 2359296)
    for n in range(3):
        A(f"buffer_load_dwordx4 v[{12+4*n}:{15+4*n}], v4, s[16:19], s56 offen offset:{64*n}")
    A.srd(20, 8, 663552)
    A.srd(24, 10, 663552)
    for uu in range(2):
        for ri in range(2):
            for n in range(3):
                r = 64 + ((uu * 2 + ri) * 3 + n) * 4
                A(f"buffer_load_dwordx4 v[{r}:{r+3}], v5, s[{20+4*ri}:{23+4*ri}], s{56 if uu == 0 else 58} offen offset:{64*n}")
    A.srd(28, 12, 663552)
    A.srd(32, 14, 663552)
    A("buffer_load_dwordx2 v[8:9], v6, s[28:31], s63 offen\nbuffer_load_dwordx2 v[10:11], v6, s[32:35], s63 offen")
    A.srd(36, 6, XN_SZ, XN_OFF)
    A.srd(40, 6, CP_SZ, CP_OFF)
    A.srd(44, 6, BU_SZ, BU_OFF)
    A.srd(48, 6, HO_SZ, HO_OFF)
    A("s_mul_i32 s64, s2, 384\nv_add_u32 v7, s64, v0\nv_lshlrev_b32 v7, 4, v7")
    A("v_mov_b32 v112, 0\nv_mov_b32 v113, 0\nv_mov_b32 v114, 0\nv_mov_b32 v115, 0")
    A("buffer_store_dwordx4 v[112:115], v7, s[48:51], 0 offen")
    A("v_lshlrev_b32 v7, 4, v1")
    A("s_waitcnt vmcnt(15)")
    F = 24
    for e in range(12):
        A(f"v_lshlrev_b32 v{F+2*e}, 16, v{12+e}\nv_and_b32 v{F+2*e+1}, 0xffff0000, v{12+e}")
    A(f"v_add_f32 v48, v{F}, v{F+1}\nv_add_f32 v49, v{F+2}, v{F+3}\nv_add_f32 v50, v{F+4}, v{F+5}\nv_add_f32 v51, v{F+6}, v{F+7}")
    for e in range(8, 24):
        A(f"v_add_f32 v{48+(e&3)}, v{48+(e&3)}, v{F+e}")
    A("v_add_f32 v48, v48, v49\nv_add_f32 v50, v50, v51\nv_add_f32 v48, v48, v50")

    def xreduce(r, t):
        A(f"v_mov_b32 v{t}, v{r}\ns_nop 1\nv_permlane32_swap_b32 v{r}, v{t}\nv_add_f32 v{r}, v{r}, v{t}")
        A(f"v_mov_b32 v{t}, v{r}\ns_nop 1\nv_permlane16_swap_b32 v{r}, v{t}\nv_add_f32 v{r}, v{r}, v{t}")
    xreduce(48, 49)
    A(f"v_mul_f32 v50, {f2u(1/96.0)}, v48")
    A("v_mov_b32 v52, 0\nv_mov_b32 v53, 0")
    for e in range(24):
        t = 54 + (e & 3)
        A(f"v_sub_f32 v{t}, v{F+e}, v50\nv_fmac_f32 v{52+(e&1)}, v{t}, v{t}")
    A("v_add_f32 v49, v52, v53")
    xreduce(49, 51)
    A("v_mul_u32_u24 v51, 48, v2\ns_lshl_b32 s64, s3, 3\nv_add_u32 v52, s64, v51")
    A("ds_write_b64 v52, v[48:49] offset:24576")
    A("s_waitcnt vmcnt(1)")
    A("s_mov_b32 s65, 0x05040100\ns_mov_b32 s66, 0x07060302")
    A("v_perm_b32 v112, v10, v8, s65\nv_perm_b32 v113, v10, v8, s66\nv_perm_b32 v114, v11, v9, s65\nv_perm_b32 v115, v11, v9, s66")
    A("s_lshl_b32 s64, s59, 10")
    A("buffer_store_dwordx4 v[112:115], v7, s[40:43], s64 offen")
    A("s_waitcnt lgkmcnt(0)\ns_barrier")
    A("ds_read_b128 v[116:119], v51 offset:24576\nds_read_b128 v[120:123], v51 offset:24592\nds_read_b128 v[124:127], v51 offset:24608")
    A("s_waitcnt lgkmcnt(0)")
    A("v_add_f32 v48, v116, v118\nv_add_f32 v49, v120, v122\nv_add_f32 v50, v124, v126\nv_add_f32 v48, v48, v49\nv_add_f32 v48, v48, v50")
    A(f"v_mul_f32 v48, {f2u(1/576.0)}, v48")
    A("v_add_f32 v49, v117, v119\nv_add_f32 v50, v121, v123\nv_add_f32 v52, v125, v127\nv_add_f32 v49, v49, v50\nv_add_f32 v49, v49, v52")
    A(f"v_mov_b32 v53, 0\ns_mov_b32 s64, {f2u(1/96.0)}")
    for w in range(6):
        A(f"v_fma_f32 v54, v{116+2*w}, s64, -v48\nv_fmac_f32 v53, v54, v54")
    A(f"v_mov_b32 v54, {f2u(96.0)}\nv_fmac_f32 v49, v53, v54\nv_mul_f32 v49, {f2u(1/576.0)}, v49")
    A("v_cvt_pk_bf16_f32 v50, v48, v49\nv_lshlrev_b32 v48, 16, v50\nv_and_b32 v49, 0xffff0000, v50")
    A(f"v_add_f32 v49, {f2u(1e-5)}, v49\nv_cvt_pk_bf16_f32 v49, v49, v49\nv_lshlrev_b32 v49, 16, v49\nv_sqrt_f32 v49, v49\ns_nop 0")
    A("v_cvt_pk_bf16_f32 v49, v49, v49\nv_lshlrev_b32 v49, 16, v49\nv_rcp_f32 v49, v49")
    for e in range(24):
        A(f"v_sub_f32 v{F+e}, v{F+e}, v48")
    for e in range(12):
        A(f"v_cvt_pk_bf16_f32 v{12+e}, v{F+2*e}, v{F+2*e+1}")
    for e in range(12):
        A(f"v_lshlrev_b32 v{F+2*e}, 16, v{12+e}\nv_and_b32 v{F+2*e+1}, 0xffff0000, v{12+e}")
    for e in range(24):
        A(f"v_mul_f32 v{F+e}, v{F+e}, v49")
    for e in range(12):
        A(f"v_cvt_pk_bf16_f32 v{12+e}, v{F+2*e}, v{F+2*e+1}")
    A("s_cmp_ge_u32 s3, 3\ns_cselect_b32 s64, 1, 0\ns_cmp_lg_u32 s64, s53\ns_cbranch_scc1 K0_nostore")
    A("s_lshr_b32 s64, s52, 4\ns_mul_i32 s64, s64, 18\ns_mul_i32 s65, s3, 3\ns_add_u32 s64, s64, s65\ns_lshl_b32 s64, s64, 14")
    A("s_and_b32 s65, s52, 15\ns_lshl_b32 s65, s65, 10\ns_add_u32 s64, s64, s65")
    for n in range(3):
        A(f"buffer_store_dwordx4 v[{12+4*n}:{15+4*n}], v7, s[36:39], s64 offen")
        if n < 2:
            A("s_add_u32 s64, s64, 16384")
    A("K0_nostore:")
    A("s_nop 1")
    for t in range(4):
        for n in range(3):
            r = 64 + (t * 3 + n) * 4
            c = "0" if n == 0 else f"v[{24+4*t}:{27+4*t}]"
            A(f"v_mfma_f32_16x16x32_bf16 v[{24+4*t}:{27+4*t}], v[{12+4*n}:{15+4*n}], v[{r}:{r+3}], {c}")
    A("s_lshl_b32 s64, s3, 12\nv_add_u32 v50, s64, v7\ns_nop 7")
    for t in range(4):
        A(f"ds_write_b128 v50, v[{24+4*t}:{27+4*t}] offset:{1024*t}")
    A("s_waitcnt lgkmcnt(0)\ns_barrier")
    A("s_cmp_ge_u32 s3, 4\ns_cbranch_scc1 K0_end")
    A("s_lshl_b32 s64, s3, 10\nv_add_u32 v50, s64, v7")
    for w in range(6):
        A(f"ds_read_b128 v[{64+4*w}:{67+4*w}], v50 offset:{4096*w}")
    A("s_lshr_b32 s64, s3, 1\ns_lshl_b32 s65, s53, 1\ns_add_u32 s64, s64, s65\ns_lshl_b32 s64, s64, 7\ns_add_u32 s64, s64, s52")
    A("s_lshl_b32 s64, s64, 1\ns_and_b32 s65, s3, 1\ns_add_u32 s64, s64, s65\ns_lshl_b32 s64, s64, 10")
    A("s_waitcnt lgkmcnt(0)")
    for r in range(4):
        A(f"v_add_f32 v{64+r}, v{64+r}, v{68+r}\nv_add_f32 v{72+r}, v{72+r}, v{76+r}\nv_add_f32 v{80+r}, v{80+r}, v{84+r}")
        A(f"v_add_f32 v{64+r}, v{64+r}, v{72+r}\nv_add_f32 v{64+r}, v{64+r}, v{80+r}")
    A("buffer_store_dwordx4 v[64:67], v7, s[44:47], s64 offen")
    if opts.get("stamp"):
        A("s_waitcnt vmcnt(0)")
    stamp(A, opts, 0, 1, 6, 60)
    A("K0_end:\ns_endpgm")
    return kernel_desc("k0_kernel", 128, 0, 96), "; @launch kernel=k0_kernel grid=(256,1,1) block=(384,1,1) lds=25600"


R = 4
STAGE = 36864


def cmul(A, dr, di, ar, ai, br, bi, cr=None, ci=None, t=None):
    if cr is None:
        A(f"v_mul_f32 {t[0]}, {ar}, {br}\nv_mul_f32 {t[1]}, {ar}, {bi}")
    else:
        A(f"v_fma_f32 {t[0]}, {ar}, {br}, {cr}\nv_fma_f32 {t[1]}, {ar}, {bi}, {ci}")
    A(f"v_fma_f32 {t[0]}, -{ai}, {bi}, {t[0]}\nv_fma_f32 {di}, {ai}, {br}, {t[1]}\nv_mov_b32 {dr}, {t[0]}")


def gen_k1(A, opts):
    NM = 8
    kernel_head(A, "k1_kernel")
    A("s_cmp_ge_u32 s2, 256\ns_cbranch_scc1 K1_end")
    A("s_load_dwordx4 s[4:7], s[0:1], 80\ns_load_dwordx4 s[8:11], s[0:1], 24\ns_load_dwordx2 s[52:53], s[0:1], 120")
    A("s_load_dwordx4 s[56:59], s[0:1], 8\ns_load_dwordx2 s[60:61], s[0:1], 56")
    GV, WV, MV = 0, 160, 200
    vLane16, vXrd, vWrd, vRd5 = MV, MV + 1, MV + 2, MV + 3
    vOff = MV + 4
    vLr, vLi, vKr, vKi = 209, 210, 211, 212
    vP32, vP128, vP512 = 213, 215, 217
    vT = 160
    vIM = 224
    XA = 160
    A(f"v_lshrrev_b32 v{vT+1}, 6, v0\nv_and_b32 v{vT}, 63, v0\nv_readfirstlane_b32 s3, v{vT+1}")
    A(f"v_lshlrev_b32 v{vLane16}, 4, v{vT}")
    stamp(A, opts, 1, 0, 52, 10)
    A("s_and_b32 s12, s2, 7\ns_lshr_b32 s13, s2, 3\ns_and_b32 s14, s13, 7\ns_lshr_b32 s13, s13, 3\ns_lshl_b32 s12, s12, 2\ns_add_u32 s15, s12, s13")
    A("s_and_b32 s16, s3, 1\ns_lshr_b32 s17, s3, 1")
    A("s_lshr_b32 s62, s15, 3\ns_add_u32 s62, s62, 32\ns_and_b32 s63, s15, 7\ns_cmp_eq_u32 s63, 0\ns_cselect_b32 s63, 1, 0")
    A("s_cmp_eq_u32 s16, 1\ns_cselect_b32 s62, s15, s62\ns_cselect_b32 s63, 1, s63")
    A(f"v_and_b32 v{vT+1}, 15, v{vT}\ns_lshl_b32 s18, s62, 4\nv_add_lshl_u32 v{vT+8}, v{vT+1}, s18, 1")
    A("s_mul_i32 s35, s16, 5\ns_mov_b32 s42, 3641")
    for n in range(5):
        c, p, jx, k = vT + 1, vT + 2, vT + 3, vT + 4
        A(f"s_add_u32 s36, s35, {n}\ns_lshl_b32 s36, s36, 6\nv_add_u32 v{c}, s36, v{vT}")
        A(f"v_mul_lo_u32 v{p}, v{c}, s42\nv_lshrrev_b32 v{p}, 16, v{p}")
        A(f"v_mul_u32_u24 v{jx}, 18, v{p}\nv_sub_u32 v{jx}, v{c}, v{jx}")
        A(f"v_bfe_u32 v{k}, v{p}, 2, 2\nv_lshlrev_b32 v{k}, 3, v{k}\nv_lshrrev_b32 v{c}, 4, v{p}\nv_lshl_add_u32 v{k}, v{c}, 2, v{k}\nv_and_b32 v{c}, 3, v{p}\nv_add_u32 v{k}, v{k}, v{c}")
        A(f"v_mul_u32_u24 v{k}, 9216, v{k}\nv_lshl_add_u32 v{vOff+n}, v{jx}, 4, v{k}")
        if 0 < n < 4:
            A(f"v_subrev_u32 v{vOff+n}, {n*1024}, v{vOff+n}")
    A(f"v_lshrrev_b32 v{vT+1}, 2, v{vT}\nv_lshrrev_b32 v{vT+2}, 4, v{vT}\nv_sub_u32 v{vT+2}, 4, v{vT+2}\nv_xor_b32 v{vT+2}, v{vT+2}, v{vT}\nv_and_b32 v{vT+2}, 3, v{vT+2}")
    A(f"v_mul_u32_u24 v{vT+1}, 1152, v{vT+1}\nv_lshl_add_u32 v{vT+1}, v{vT+2}, 4, v{vT+1}")
    A(f"s_cmp_eq_u32 s16, 1\ns_cselect_b64 vcc, -1, 0\nv_cndmask_b32 v{vOff+4}, v{vOff+4}, v{vT+1}, vcc")
    A("s_waitcnt lgkmcnt(0)")
    A.srd(64, 56, 1152)
    A.srd(68, 58, 1152)
    A.srd(72, 60, 1152)
    A(f"buffer_load_ushort v{vT+10}, v{vT+8}, s[64:67], 0 offen\nbuffer_load_ushort v{vT+11}, v{vT+8}, s[68:71], 0 offen\nbuffer_load_ushort v{vT+12}, v{vT+8}, s[72:75], 0 offen")
    A.srd(20, 52, XN_SZ, XN_OFF)
    A("s_cmp_eq_u32 s17, 1\ns_cselect_b32 s24, s6, s4\ns_cselect_b32 s25, s7, s5\ns_mov_b32 s26, 5308416\ns_mov_b32 s27, 0x20000")
    A("s_cselect_b32 s32, s10, s8\ns_cselect_b32 s33, s11, s9")
    A("s_cmp_eq_u32 s16, 1\ns_cselect_b32 s28, s32, s24\ns_cselect_b32 s29, s33, s25\ns_cselect_b32 s30, 663552, s26\ns_mov_b32 s31, 0x20000")
    A("s_cselect_b32 s41, 64, 294912")
    A("s_mul_i32 s38, s14, 294912\ns_lshl_b32 s36, s3, 12\ns_add_u32 s38, s38, s36")
    A("s_mul_i32 s39, s15, 288")
    A("s_mul_i32 s40, s15, 18432\ns_cmp_eq_u32 s16, 1\ns_cselect_b32 s40, s40, s39")
    A("s_lshl_b32 s43, s3, 12")
    A("s_mul_i32 s44, s17, 10240\ns_lshl_b32 s36, s35, 10\ns_add_u32 s44, s44, s36\ns_add_u32 s44, s44, 16384")
    A("s_add_u32 s45, s44, 4096")
    A("s_mov_b32 s46, 0")
    A.srd(84, 52, BU_SZ, BU_OFF)
    A("s_sub_u32 s18, s63, s16\ns_cmp_eq_u32 s18, 1\ns_cbranch_scc0 K1_nobu")
    A("s_sub_u32 s18, s62, 32\ns_lshl_b32 s18, s18, 7\ns_lshl_b32 s19, s14, 4\ns_add_u32 s18, s18, s19\ns_lshl_b32 s19, s17, 3\ns_add_u32 s18, s18, s19\ns_lshl_b32 s18, s18, 11")
    for m in range(8):
        A(f"buffer_load_dwordx4 a[{224+4*m}:{227+4*m}], v{vLane16}, s[84:87], s18 offen offset:{(m&1)*2048}")
        A(f"buffer_load_dwordx4 v[{vIM+4*m}:{vIM+3+4*m}], v{vLane16}, s[84:87], s18 offen offset:{(m&1)*2048+1024}")
        if m & 1:
            A("s_add_u32 s18, s18, 4096")
    A("K1_nobu:")

    def dma_list():
        G = []
        for x in range(4):
            g = []
            if x == 0:
                g.append("s_add_u32 m0, s46, s43")
            g.append(f"buffer_load_dwordx4 v{vLane16}, s[20:23], s38 offen offset:{x*1024} lds")
            if x == 3:
                g.append("s_add_u32 s38, s38, 16384")
            G.append(g)
        for n in range(5):
            g = []
            if n == 0:
                g.append("s_add_u32 m0, s46, s44")
            if n == 4:
                g.append("s_add_u32 m0, s46, s45")
                g.append(f"buffer_load_dwordx4 v{vOff+n}, s[28:31], s40 offen lds")
                g.append("s_add_u32 s40, s40, s41")
            else:
                g.append(f"buffer_load_dwordx4 v{vOff+n}, s[24:27], s39 offen offset:{n*1024} lds")
                if n == 3:
                    g.append("s_add_u32 s39, s39, 294912")
            G.append(g)
        G[-1].append(f"s_add_u32 s46, s46, {STAGE}\ns_cmp_eq_u32 s46, {R*STAGE}\ns_cselect_b32 s46, 0, s46")
        return G
    D = dma_list()
    nd = len(D)
    for st in range(R):
        for g in D:
            for ln in g:
                A(ln)
                if "m0" in ln:
                    A("s_nop 0")
    A.srd(76, 52, H2_SZ, H2_OFF)
    A.srd(80, 52, HO_SZ, HO_OFF)
    A(f"s_lshl_b32 s36, s17, 13\nv_add_u32 v{vXrd}, s36, v{vLane16}")
    A(f"v_lshrrev_b32 v{vT+1}, 2, v{vT}\nv_mul_u32_u24 v{vT+1}, 288, v{vT+1}\nv_and_b32 v{vT+2}, 3, v{vT}\nv_lshl_add_u32 v{vT+1}, v{vT+2}, 3, v{vT+1}")
    A("s_and_b32 s18, s15, 1\ns_cmp_eq_u32 s18, 0\ns_cselect_b32 s36, 4, 1\ns_cselect_b32 s37, 0, 5\ns_cselect_b32 s19, 8, 0")
    A("s_cmp_eq_u32 s16, 0\ns_cselect_b32 s54, s36, s37")
    A(f"s_lshl_b32 s36, s54, 5\ns_add_u32 s36, s36, 16384\nv_add_u32 v{vWrd}, s36, v{vT+1}")
    A(f"s_lshl_b32 s36, s19, 5\ns_add_u32 s36, s36, 16384\nv_add_u32 v{vRd5}, s36, v{vT+1}")
    A(f"v_and_b32 v{vT+1}, 15, v{vT}\nv_lshrrev_b32 v{vT+2}, 2, v{vT+1}\nv_sub_u32 v{vT+2}, 4, v{vT+2}\nv_lshrrev_b32 v{vT+3}, 4, v{vT}\nv_xor_b32 v{vT+2}, v{vT+2}, v{vT+3}\nv_and_b32 v{vT+2}, 3, v{vT+2}")
    A(f"v_lshl_add_u32 v{vT+1}, v{vT+1}, 2, v{vT+2}\nv_lshlrev_b32 v{vT+1}, 4, v{vT+1}\nv_add_u32 v{vT+1}, {16384+9216}, v{vT+1}")
    A(f"s_cmp_eq_u32 s16, 1\ns_cselect_b64 vcc, -1, 0\nv_cndmask_b32 v{vRd5}, v{vRd5}, v{vT+1}, vcc")
    for i in range(160):
        A(f"v_mov_b32 v{GV+i}, 0\nv_accvgpr_write_b32 a{i}, 0")
    A(f"s_waitcnt vmcnt({R*nd})")
    lre, lim, ldt = vT + 10, vT + 11, vT + 12
    t0, t1, t2, t3 = vT + 1, vT + 2, vT + 3, vT + 4
    LOG2E = f2u(1.4426950408889634)
    A(f"v_lshlrev_b32 v{lre}, 16, v{lre}\nv_lshlrev_b32 v{lim}, 16, v{lim}\nv_lshlrev_b32 v{ldt}, 16, v{ldt}")
    A(f"v_mul_f32 v{ldt}, {LOG2E}, v{ldt}\nv_exp_f32 v{ldt}, v{ldt}\ns_nop 0\nv_cvt_pk_bf16_f32 v{ldt}, v{ldt}, v{ldt}\nv_lshlrev_b32 v{ldt}, 16, v{ldt}")
    A(f"v_mul_f32 v{t0}, v{ldt}, v{lre}\nv_mul_f32 v{t1}, v{ldt}, v{lim}")
    A(f"v_mul_f32 v{t0}, {LOG2E}, v{t0}\nv_exp_f32 v{t0}, v{t0}")
    A(f"v_mul_f32 v{t1}, 0.15915494, v{t1}\nv_rndne_f32 v{t2}, v{t1}\nv_sub_f32 v{t1}, v{t1}, v{t2}")
    A(f"v_cos_f32 v{t2}, v{t1}\nv_sin_f32 v{t3}, v{t1}\ns_nop 0\nv_mul_f32 v{vLr}, v{t0}, v{t2}\nv_mul_f32 v{vLi}, v{t0}, v{t3}")
    A(f"v_mul_f32 v{t0}, v{lre}, v{lre}\nv_fmac_f32 v{t0}, v{lim}, v{lim}\nv_rcp_f32 v{t0}, v{t0}\nv_add_f32 v{t1}, -1.0, v{vLr}")
    A(f"v_add_f32 v{t0}, v{t0}, v{t0}")
    A(f"v_mul_f32 v{t2}, v{t1}, v{lre}\nv_fmac_f32 v{t2}, v{vLi}, v{lim}\nv_mul_f32 v{vKr}, v{t2}, v{t0}")
    A(f"v_mul_f32 v{t2}, v{vLi}, v{lre}\nv_fma_f32 v{t2}, -v{t1}, v{lim}, v{t2}\nv_mul_f32 v{vKi}, v{t2}, v{t0}")
    A(f"v_mov_b32 v{t0}, v{vLr}\nv_sub_f32 v{t1}, 0, v{vLi}")
    for s in range(9):
        A(f"v_mul_f32 v{t2}, v{t1}, v{t1}\nv_mul_f32 v{t3}, v{t0}, v{t1}\nv_fma_f32 v{t0}, v{t0}, v{t0}, -v{t2}\nv_add_f32 v{t1}, v{t3}, v{t3}")
        dst = {4: vP32, 6: vP128, 8: vP512}.get(s)
        if dst:
            A(f"v_mov_b32 v{dst}, v{t0}\nv_mov_b32 v{dst+1}, v{t1}")

    def wreads(role, jj):
        u, isU = jj >> 1, jj & 1
        base = WV + 4 * jj
        if u == 4:
            if role == 1:
                return [f"ds_read_b128 v[{base}:{base+3}], v{vRd5} offset:{isU*10240}"]
            return [f"ds_read_b64_tr_b16 v[{base+2*t}:{base+2*t+1}], v{vRd5} offset:{isU*10240 + t*16*288}" for t in range(2)]
        return [f"ds_read_b64_tr_b16 v[{base+2*t}:{base+2*t+1}], v{vWrd} offset:{isU*10240 + u*32 + t*16*288}" for t in range(2)]

    def xread(par, m):
        b = XA + (par * NM + m) * 4
        return f"ds_read_b128 a[{b}:{b+3}], v{vXrd} offset:{m*1024}"

    def mfma(role, jj, m, par):
        u, isU = jj >> 1, jj & 1
        c = (u * NM + m) * 4
        acc = f"a[{c}:{c+3}]" if isU else f"v[{GV+c}:{GV+c+3}]"
        w = f"v[{WV+4*jj}:{WV+4*jj+3}]"
        xb = XA + (par * NM + m) * 4
        x = f"a[{xb}:{xb+3}]"
        if role == 1 and u == 4:
            return f"v_mfma_f32_16x16x32_bf16 {acc}, {x}, {w}, {acc}"
        return f"v_mfma_f32_16x16x32_bf16 {acc}, {w}, {x}, {acc}"

    adv = [f"s_add_u32 s47, s47, {STAGE}", f"s_cmp_eq_u32 s47, {R*STAGE}", f"s_cselect_b32 s48, {-(R-1)*STAGE & 0xffffffff}, s50",
           "s_cselect_b32 s47, 0, s47", f"v_add_u32 v{vXrd}, s48, v{vXrd}", f"v_add_u32 v{vWrd}, s48, v{vWrd}", f"v_add_u32 v{vRd5}, s48, v{vRd5}"]
    A(f"s_mov_b32 s47, 0\ns_mov_b32 s50, {STAGE}\ns_mov_b32 s49, 0")
    A(f"s_waitcnt vmcnt({(R-1)*nd})\ns_barrier")
    for m in range(NM):
        A(xread(0, m))
    for jj in range(8):
        for ln in wreads(0, jj):
            A(ln)
    A("s_cmp_eq_u32 s16, 1\ns_cbranch_scc1 K1_role1")
    for role in (0, 1):
        A(f"K1_role{role}:")
        for jj in (8, 9):
            for ln in wreads(role, jj):
                A(ln)
        A("s_waitcnt lgkmcnt(0)")
        stamp(A, opts, 1, 1, 52, 220)
        A(".p2align 6")
        A(f"K1_loop{role}:")
        for par in (0, 1):
            nm = 10 * NM
            fill = [[] for _ in range(nm)]
            for i, ln in enumerate(adv):
                fill[min(i // 2, NM - 2)].append(ln)
            fill[NM - 1].append(f"s_waitcnt vmcnt({(R-2)*nd}) lgkmcnt(0)")
            fill[NM - 1].append("s_barrier")
            for jj in range(10):
                for t, ln in enumerate(wreads(role, jj)):
                    pos = (jj + 1) * NM - 1 + t
                    fill[min(pos, nm - 1)].append(ln)
            for m in range(NM):
                fill[(1 + m) * NM + 2].append(xread(par ^ 1, m))
            for i, g in enumerate(D):
                pos = (1 + i) * NM + NM // 2
                for ln in g:
                    if "m0" in ln:
                        fill[pos - 1].append(ln)
                    else:
                        fill[pos].append(ln)
            seq = [ln for f in fill for ln in f if ln.startswith("ds_read")]
            lastx = max(i for i, ln in enumerate(seq) if " a[" in ln)
            A(f"s_waitcnt lgkmcnt({len(seq) - 1 - lastx})")
            for t in range(nm):
                A(mfma(role, t // NM, t % NM, par))
                for ln in fill[t]:
                    A(ln)
        A(f"s_add_u32 s49, s49, 2\ns_cmp_lt_u32 s49, 18\ns_cbranch_scc1 K1_loop{role}")
        if role == 0:
            A("s_branch K1_epi")
    A("K1_epi:")
    A("s_waitcnt vmcnt(0) lgkmcnt(0)\ns_barrier")
    stamp(A, opts, 1, 2, 52, 220)
    A(f"s_lshl_b32 s36, s14, 1\ns_add_u32 s55, s36, s17\ns_mul_i32 s88, s55, {8*TILE_STRIDE}")
    A("s_lshr_b32 s36, s15, 1\ns_mul_i32 s36, s36, 9\ns_and_b32 s18, s15, 1\ns_mul_i32 s37, s18, 9\ns_add_u32 s37, s37, s54\ns_lshr_b32 s37, s37, 1")
    A("s_add_u32 s37, s37, s36\ns_lshl_b32 s37, s37, 10\ns_add_u32 s89, s88, s37")
    A("s_add_u32 s36, s36, 4\ns_lshl_b32 s36, s36, 10\ns_add_u32 s36, s36, s88\ns_lshl_b32 s18, s18, 3\ns_add_u32 s36, s36, s18")
    T = 160
    A("s_cmp_eq_u32 s16, 1\ns_cbranch_scc1 K1_cpim")
    for m in range(8):
        c = (4 * NM + m) * 4
        t = T + (m & 1) * 8
        for r in range(4):
            A(f"v_accvgpr_read_b32 v{t+r}, a{c+r}")
        for r in range(4):
            A(f"v_mul_f32 v{t+r}, v{t+r}, v{c+r}")
        A(f"v_cvt_pk_bf16_f32 v{t+4}, v{t}, v{t+1}\nv_cvt_pk_bf16_f32 v{t+5}, v{t+2}, v{t+3}")
        A(f"buffer_store_dwordx2 v[{t+4}:{t+5}], v{vLane16}, s[76:79], s36 offen\ns_add_u32 s36, s36, {TILE_STRIDE}")
    A("s_cmp_eq_u32 s63, 0\ns_cbranch_scc1 K1_pairs")
    for i in range(32):
        A(f"v_accvgpr_read_b32 v{128+i}, a{224+i}")
    A("s_branch K1_scan1")
    A("K1_cpim:")
    for i in range(32):
        A(f"v_accvgpr_read_b32 v{vIM+i}, a{128+i}")
    A("K1_scan1:")
    RE = 128
    hr, hi, u0, u1 = T, T + 1, T + 2, T + 3
    A(f"v_mov_b32 v{hr}, v{RE}\nv_mov_b32 v{hi}, v{vIM}")
    a, b = (hr, hi), (u0, u1)
    for t in range(1, 32):
        A(f"v_fma_f32 v{b[0]}, v{vLr}, v{a[0]}, v{RE+t}\nv_fma_f32 v{b[1]}, v{vLr}, v{a[1]}, v{vIM+t}")
        A(f"v_fma_f32 v{b[0]}, -v{vLi}, v{a[1]}, v{b[0]}\nv_fma_f32 v{b[1]}, v{vLi}, v{a[0]}, v{b[1]}")
        a, b = b, a
    Er, Ei = T + 4, T + 8
    A(f"v_mul_f32 v{Er}, v{vKr}, v{a[0]}\nv_mul_f32 v{Ei}, v{vKr}, v{a[1]}")
    A(f"v_fma_f32 v{Er}, -v{vKi}, v{a[1]}, v{Er}\nv_fma_f32 v{Ei}, -v{vKi}, v{a[0]}, -v{Ei}")

    def gather4(b0, b1):
        for bb in (b0, b1):
            A(f"v_mov_b32 v{bb+2}, v{bb}")
        A("s_nop 1")
        for bb in (b0, b1):
            A(f"v_permlane32_swap_b32 v{bb}, v{bb+2}")
        for bb in (b0, b1):
            A(f"v_mov_b32 v{bb+1}, v{bb}\nv_mov_b32 v{bb+3}, v{bb+2}")
        A("s_nop 1")
        for bb in (b0, b1):
            A(f"v_permlane16_swap_b32 v{bb}, v{bb+1}\nv_permlane16_swap_b32 v{bb+2}, v{bb+3}")
        A("s_nop 1")

    def horner(dr, di, P, xs, tmp):
        cur = xs[0]
        for n, x in enumerate(xs[1:]):
            o = (dr, di) if n == len(xs) - 2 else (tmp + 2 * (n & 1), tmp + 2 * (n & 1) + 1)
            A(f"v_fma_f32 v{o[0]}, v{P}, v{cur[0]}, v{x[0]}\nv_fma_f32 v{o[1]}, v{P}, v{cur[1]}, v{x[1]}")
            A(f"v_fma_f32 v{o[0]}, -v{P+1}, v{cur[1]}, v{o[0]}\nv_fma_f32 v{o[1]}, v{P+1}, v{cur[0]}, v{o[1]}")
            cur = o
    gather4(Er, Ei)
    PUB = T + 12
    horner(PUB, PUB + 2, vP32, [(Er + n, Ei + n) for n in range(4)], T)
    A(f"v_mov_b32 v{PUB+1}, {TAG}\nv_mov_b32 v{PUB+3}, {TAG}")
    vA = T + 16
    A(f"s_lshl_b32 s36, s62, 4\ns_add_u32 s36, s36, s55\ns_lshl_b32 s36, s36, 8")
    A(f"v_and_b32 v{vA}, 0xf0, v{vLane16}\nv_lshrrev_b32 v{vA+1}, 8, v{vLane16}\nv_lshl_add_u32 v{vA+2}, v{vA+1}, 28, v{vA}")
    A(f"buffer_store_dwordx4 v[{PUB}:{PUB+3}], v{vA+2}, s[80:83], s36 offen sc1")
    A(f"s_lshl_b32 s37, s62, 12\ns_sub_u32 s18, s55, 16\nv_lshl_add_u32 v{vA+1}, v{vA+1}, 2, s18\nv_mov_b32 v{vA+3}, {TAG}")
    for n in range(4):
        A(f"v_add_u32 v{vA+2}, {n}, v{vA+1}\nv_cmp_le_i32 vcc, 0, v{vA+2}\nv_lshl_add_u32 v{vA+2}, v{vA+2}, 8, v{vA}")
        A(f"v_mov_b32 v{vA+4+n}, 0x40000000\nv_cndmask_b32 v{vA+8+n}, 0, v{vA+3}, vcc\nv_cndmask_b32 v{vA+4+n}, v{vA+4+n}, v{vA+2}, vcc")
    for t in range(32):
        x = T + 2 * (t & 1)
        A(f"v_mul_f32 v{x}, v{vKr}, v{RE+t}\nv_mul_f32 v{x+1}, v{vKi}, v{RE+t}")
        A(f"v_fma_f32 v{RE+t}, -v{vKi}, v{vIM+t}, v{x}\nv_fma_f32 v{vIM+t}, -v{vKr}, v{vIM+t}, -v{x+1}")
    A("K1_pairs:")
    TP = 188
    for m in range(8):
        for pr in range(2):
            c0, c1 = ((2 * pr) * NM + m) * 4, ((2 * pr + 1) * NM + m) * 4
            for r in range(4):
                A(f"v_accvgpr_read_b32 v{TP+r}, a{c0+r}")
            for r in range(4):
                A(f"v_accvgpr_read_b32 v{TP+4+r}, a{c1+r}")
            for r in range(4):
                A(f"v_mul_f32 v{TP+r}, v{TP+r}, v{c0+r}")
            for r in range(4):
                A(f"v_mul_f32 v{TP+4+r}, v{TP+4+r}, v{c1+r}")
            A(f"v_cvt_pk_bf16_f32 v{c0}, v{TP}, v{TP+1}\nv_cvt_pk_bf16_f32 v{c0+1}, v{TP+2}, v{TP+3}")
            A(f"v_cvt_pk_bf16_f32 v{c0+2}, v{TP+4}, v{TP+5}\nv_cvt_pk_bf16_f32 v{c0+3}, v{TP+6}, v{TP+7}")
            A(f"buffer_store_dwordx4 v[{c0}:{c0+3}], v{vLane16}, s[76:79], s89 offen offset:{pr*1024}")
        A(f"s_add_u32 s89, s89, {TILE_STRIDE}")
    stamp(A, opts, 1, 3, 52, 220)
    A("s_cmp_eq_u32 s63, 0\ns_cbranch_scc1 K1_done")
    G0 = 32
    A("s_mov_b32 s18, 0")
    A("K1_poll:")
    for n in range(4):
        A(f"buffer_load_dwordx4 v[{G0+4*n}:{G0+4*n+3}], v{vA+4+n}, s[80:83], s37 offen sc1")
    A("s_waitcnt vmcnt(0)")
    A(f"v_xor_b32 v{T}, v{G0+1}, v{vA+8}\nv_xor_b32 v{T+1}, v{G0+3}, v{vA+8}\nv_or_b32 v{T}, v{T}, v{T+1}")
    for n in range(1, 4):
        A(f"v_xor_b32 v{T+1}, v{G0+4*n+1}, v{vA+8+n}\nv_xor_b32 v{T+2}, v{G0+4*n+3}, v{vA+8+n}\nv_or3_b32 v{T}, v{T}, v{T+1}, v{T+2}")
    A(f"v_cmp_ne_u32 vcc, 0, v{T}\ns_add_u32 s18, s18, 1\ns_cmp_ge_u32 s18, 0x40000\ns_cbranch_scc1 K1_pollend\ns_cbranch_vccnz K1_poll")
    A("K1_pollend:")
    Sr, Si = 48, 52
    horner(Sr, Si, vP128, [(G0 + 4 * n, G0 + 4 * n + 2) for n in range(4)], T)
    gather4(Sr, Si)
    Cr, Ci = 56, 57
    horner(Cr, Ci, vP512, [(Sr + n, Si + n) for n in range(4)], T)
    A(f"v_lshrrev_b32 v{vA}, 8, v{vLane16}\nv_mov_b32 v{hr}, v{Cr}\nv_mov_b32 v{hi}, v{Ci}")
    cur = (Cr, Ci)
    for n in range(3):
        o = (58 + 2 * n, 59 + 2 * n)
        A(f"v_cmp_eq_u32 vcc, {n+1}, v{vA}")
        A(f"v_fma_f32 v{o[0]}, v{vP32}, v{cur[0]}, v{Er+n}\nv_fma_f32 v{o[1]}, v{vP32}, v{cur[1]}, v{Ei+n}")
        A(f"v_fma_f32 v{o[0]}, -v{vP32+1}, v{cur[1]}, v{o[0]}\nv_fma_f32 v{o[1]}, v{vP32+1}, v{cur[0]}, v{o[1]}")
        A(f"v_cndmask_b32 v{hr}, v{hr}, v{o[0]}, vcc\nv_cndmask_b32 v{hi}, v{hi}, v{o[1]}, vcc")
        cur = o
    vW, vR = vA + 1, vA + 2
    A(f"s_lshl_b32 s18, s3, 13\nv_lshlrev_b32 v{vW}, 11, v{vA}\nv_bfe_u32 v{vR}, v{vLane16}, 4, 4\nv_lshl_add_u32 v{vW}, v{vR}, 2, v{vW}\nv_add_u32 v{vW}, s18, v{vW}")
    A(f"v_lshrrev_b32 v{vA+3}, 2, v{vR}\nv_lshlrev_b32 v{vA+3}, 11, v{vA+3}\nv_and_b32 v{vR}, 3, v{vR}\nv_lshl_add_u32 v{vR}, v{vR}, 6, v{vA+3}")
    A(f"v_lshl_add_u32 v{vR}, v{vA}, 4, v{vR}\nv_add_u32 v{vR}, s18, v{vR}")
    a = (hr, hi)
    for t in range(32):
        A(f"v_fma_f32 v{RE+t}, v{vLr}, v{a[0]}, v{RE+t}\nv_fma_f32 v{vIM+t}, v{vLr}, v{a[1]}, v{vIM+t}")
        A(f"v_fma_f32 v{RE+t}, v{vLi}, v{a[1]}, v{RE+t}\nv_fma_f32 v{vIM+t}, -v{vLi}, v{a[0]}, v{vIM+t}")
        a = (RE + t, vIM + t)
        x = T + 2 + (t & 3)
        A(f"v_cvt_pk_bf16_f32 v{x}, v{RE+t}, v{vIM+t}\nds_write_b32 v{vW}, v{x} offset:{64*t}")
    A(f"s_add_u32 s36, s62, 144\ns_lshl_b32 s36, s36, 10\ns_add_u32 s36, s36, s88")
    A("s_waitcnt lgkmcnt(0)")
    for m in range(8):
        A(f"ds_read_b128 v[{96+4*m}:{99+4*m}], v{vR} offset:{256*m}")
    for m in range(8):
        A(f"s_waitcnt lgkmcnt({7-m})\nbuffer_store_dwordx4 v[{96+4*m}:{99+4*m}], v{vLane16}, s[76:79], s36 offen\ns_add_u32 s36, s36, {TILE_STRIDE}")
    A("K1_done:")
    if opts.get("stamp"):
        A("s_waitcnt vmcnt(0)")
    stamp(A, opts, 1, 4, 52, 220)
    A("K1_end:\ns_endpgm")
    return kernel_desc("k1_kernel", 256, 256, 96), f"; @launch kernel=k1_kernel grid=(256,1,1) block=(256,1,1) lds={R*STAGE}"


def gen_k2(A, opts):
    SL = 9216
    kernel_head(A, "k2_kernel")
    A("s_cmp_ge_u32 s2, 240\ns_cbranch_scc1 K2_end")
    A("s_and_b32 s12, s2, 7\ns_lshr_b32 s13, s2, 3\ns_mul_i32 s12, s12, 30\ns_add_u32 s12, s12, s13")
    A("s_cmp_ge_u32 s12, 234\ns_cbranch_scc1 K2_end")
    A("s_load_dwordx4 s[4:7], s[0:1], 96\ns_load_dwordx2 s[8:9], s[0:1], 120\ns_load_dwordx2 s[10:11], s[0:1], 0\ns_load_dwordx2 s[52:53], s[0:1], 64")
    A("s_mul_i32 s14, s12, 7282\ns_lshr_b32 s14, s14, 16\ns_mul_i32 s15, s14, 9\ns_sub_u32 s15, s12, s15")
    MV = 160
    vL16, vH, vW, vC = MV, MV + 1, MV + 6, MV + 10
    vRH, vRW = MV + 11, MV + 12
    vRC = MV + 16
    vX, vXN, vD = 180, 190, 200
    vO = 202
    t = 208
    A(f"v_lshrrev_b32 v{t+1}, 6, v0\nv_and_b32 v{t}, 63, v0\nv_readfirstlane_b32 s3, v{t+1}")
    A(f"v_lshlrev_b32 v{vL16}, 4, v{t}")
    A(f"s_mul_i32 s16, s14, {5*TILE_STRIDE}")
    for i in range(5):
        A(f"s_add_u32 s17, s16, {i*TILE_STRIDE - (i*1024 if i < 4 else 0)}\nv_add_u32 v{vH+i}, s17, v{vL16}")
    A(f"v_lshrrev_b32 v{t+1}, 3, v{t}\nv_mul_u32_u24 v{t+1}, 1152, v{t+1}\nv_lshrrev_b32 v{t+2}, 3, v{t}\nv_and_b32 v{t+2}, 6, v{t+2}\nv_xor_b32 v{t+2}, v{t+2}, v{t}\nv_and_b32 v{t+2}, 7, v{t+2}")
    A(f"v_lshl_add_u32 v{t+1}, v{t+2}, 4, v{t+1}\ns_lshl_b32 s17, s15, 7\nv_add_u32 v{vW}, s17, v{t+1}")
    for n in range(1, 4):
        A(f"v_add_u32 v{vW+n}, {n*8192}, v{vW}")
    A(f"s_mul_i32 s17, s15, 147456\nv_add_u32 v{vC}, s17, v{vL16}")
    A(f"s_lshl_b32 s18, s3, 10\ns_mul_i32 s19, s3, 36864\ns_lshl_b32 s20, s3, 12\ns_mul_i32 s21, s3, {4*SL}\ns_mov_b32 s22, s21\ns_add_u32 s23, s21, {4*SL}")
    A("s_waitcnt lgkmcnt(0)")
    stamp(A, opts, 2, 0, 8, 10)
    A.srd(24, 8, H2_SZ, H2_OFF)
    A.srd(28, 4, 5308416)
    A.srd(32, 8, CP_SZ, CP_OFF)

    def dma(kind):
        G = []
        for i in range(5):
            g = []
            if i == 0:
                g.append("s_mov_b32 m0, s22")
            if i == 4:
                g.append("s_add_u32 m0, s22, 4096")
            g.append(f"buffer_load_dwordx4 v{vH+i}, s[24:27], s18 offen offset:{i*1024 if i < 4 else 0} lds")
            if i == 4:
                g.append("s_add_u32 s18, s18, 4096")
            G.append(g)
        for n in range(4):
            g = []
            if n == 0:
                g.append("s_add_u32 m0, s22, 5120")
            if kind == "W":
                g.append(f"buffer_load_dwordx4 v{vW+n}, s[28:31], s19 offen offset:{n*1024} lds")
                if n == 3:
                    g.append(f"s_add_u32 s19, s19, {4*36864}")
            else:
                g.append(f"buffer_load_dwordx4 v{vC}, s[32:35], s20 offen offset:{n*1024} lds")
                if n == 3:
                    g.append("s_add_u32 s20, s20, 16384")
            G.append(g)
        G[-1].append(f"s_add_u32 s22, s22, {SL}\ns_cmp_eq_u32 s22, s23\ns_cselect_b32 s22, s21, s22")
        return G
    for st in range(4):
        for g in dma("W"):
            for ln in g:
                A(ln)
                if "m0" in ln:
                    A("s_nop 0")
    A.srd(36, 10, 2359296)
    A.srd(40, 8, XN_SZ, XN_OFF)
    A.srd(44, 52, 1152)
    A.srd(48, 6, 4718592)
    A(f"v_and_b32 v{t+1}, 15, v{t}\nv_lshrrev_b32 v{t+2}, 4, v{t}")
    A(f"v_lshrrev_b32 v{t+3}, 2, v{t+1}\nv_lshlrev_b32 v{t+3}, 5, v{t+3}\nv_and_b32 v{t+4}, 3, v{t+1}\nv_add_u32 v{t+3}, v{t+3}, v{t+4}")
    A(f"s_lshl_b32 s12, s15, 6\ns_lshl_b32 s13, s3, 4\ns_add_u32 s12, s12, s13")
    A(f"v_lshl_add_u32 v{t+4}, v{t+2}, 2, s12")
    A(f"v_lshlrev_b32 v{t+5}, 1, v{t+4}\nbuffer_load_dwordx2 v[{vD}:{vD+1}], v{t+5}, s[44:47], 0 offen")
    A(f"v_bfe_u32 v{t+6}, v{t+4}, 3, 2\nv_lshl_add_u32 v{t+6}, v{t+6}, 4, v{t+1}\nv_lshlrev_b32 v{t+6}, 4, v{t+6}\nv_and_b32 v{t+7}, 7, v{t+4}\nv_lshl_add_u32 v{t+6}, v{t+7}, 1, v{t+6}")
    A("s_lshr_b32 s13, s12, 5\ns_mul_i32 s16, s14, 5")
    for i in range(5):
        A(f"s_add_u32 s17, s16, {i}\ns_lshr_b32 s54, s17, 3\ns_lshl_b32 s54, s54, 7\ns_and_b32 s55, s17, 7\ns_lshl_b32 s55, s55, 2\ns_add_u32 s54, s54, s55")
        A(f"v_add_u32 v{t+7}, s54, v{t+3}\nv_mul_u32_u24 v{t+7}, 576, v{t+7}\nv_add_u32 v{t+7}, v{t+7}, v{t+4}\nv_lshlrev_b32 v{vO+i}, 2, v{t+7}\nv_lshlrev_b32 v{t+7}, 1, v{t+7}")
        A(f"buffer_load_dwordx2 v[{vX+2*i}:{vX+2*i+1}], v{t+7}, s[36:39], 0 offen")
        A(f"s_lshr_b32 s54, s17, 4\ns_mul_i32 s54, s54, 18\ns_add_u32 s54, s54, s13\ns_lshl_b32 s54, s54, 4\ns_and_b32 s55, s17, 15\ns_add_u32 s54, s54, s55\ns_lshl_b32 s54, s54, 10")
        A(f"buffer_load_dwordx2 v[{vXN+2*i}:{vXN+2*i+1}], v{t+6}, s[40:43], s54 offen")
    NX = 11
    A(f"v_add_u32 v{vRH}, s21, v{vL16}")
    A(f"v_lshrrev_b32 v{t+1}, 2, v{t}\nv_lshrrev_b32 v{t+2}, 3, v{t}\nv_and_b32 v{t+2}, 3, v{t+2}\nv_xor_b32 v{t+2}, s3, v{t+2}")
    A(f"v_lshlrev_b32 v{t+1}, 7, v{t+1}\nv_and_b32 v{t+3}, 3, v{t}\nv_lshl_add_u32 v{t+1}, v{t+3}, 3, v{t+1}\ns_add_u32 s17, s21, 5120\nv_add_u32 v{t+1}, s17, v{t+1}")
    for dr in range(4):
        A(f"v_xor_b32 v{t+3}, {dr}, v{t+2}\nv_lshl_add_u32 v{vRW+dr}, v{t+3}, 5, v{t+1}")
        A(f"s_xor_b32 s54, s3, {dr}\ns_lshl_b32 s54, s54, 10\ns_add_u32 s54, s54, s17\nv_add_u32 v{vRC+dr}, s54, v{vL16}")
    for i in range(160):
        A(f"v_mov_b32 v{i}, 0")

    def reads(kind, par, slot):
        b = par * 36
        L = [f"ds_read_b128 a[{b+4*i}:{b+4*i+3}], v{vRH} offset:{slot*SL + i*1024}" for i in range(5)]
        for dr in range(4):
            w = b + 20 + 4 * dr
            if kind == "W":
                L += [f"ds_read_b64_tr_b16 a[{w+2*tt}:{w+2*tt+1}], v{vRW+dr} offset:{slot*SL + tt*2048}" for tt in range(2)]
            else:
                L.append(f"ds_read_b128 a[{w}:{w+3}], v{vRC+dr} offset:{slot*SL}")
        return L

    def step(i, ckind, rkind, dkind, wait):
        par = i & 1
        b = par * 36
        accb = 0 if ckind == "W" else 80
        if rkind:
            A(f"s_waitcnt vmcnt({wait})")
            for ln in reads(rkind, par ^ 1, (i + 1) & 3):
                A(ln)
        G = dma(dkind) if dkind else []
        fill = [[] for _ in range(20)]
        for n, g in enumerate(G):
            pos = 2 * n + 1
            for ln in g:
                fill[pos - 1 if "m0" in ln else pos].append(ln)
        for k in range(20):
            dr, tt = k // 5, k % 5
            c = accb + (dr * 5 + tt) * 4
            A(f"v_mfma_f32_16x16x32_bf16 v[{c}:{c+3}], a[{b+20+4*dr}:{b+23+4*dr}], a[{b+4*tt}:{b+4*tt+3}], v[{c}:{c+3}]")
            for ln in fill[k]:
                A(ln)
        if rkind:
            A("s_waitcnt lgkmcnt(0)")
    A(f"s_waitcnt vmcnt({27 + NX})")
    for ln in reads("W", 0, 0):
        A(ln)
    A("s_waitcnt lgkmcnt(0)\ns_mov_b32 s16, 0")
    stamp(A, opts, 2, 1, 8, 220)
    A(".p2align 6\nK2_loop:")
    for i in range(4):
        step(i, "W", "W", "W", 18)
    A("s_add_u32 s16, s16, 1\ns_cmp_lt_u32 s16, 8\ns_cbranch_scc1 K2_loop")
    for i in range(32, 45):
        ck = "W" if i < 36 else "C"
        rk = None if i == 44 else ("W" if i + 1 < 36 else "C")
        dk = "C" if i + 4 <= 44 else None
        wait = 9 * min(2, 44 - (i + 1)) if rk else 0
        step(i, ck, rk, dk, wait)
    stamp(A, opts, 2, 2, 8, 220)
    A("s_barrier")
    for dr in range(1, 4):
        A(f"s_xor_b32 s54, s3, {dr}\ns_mul_i32 s54, s54, 30720\nv_add_u32 v{t+dr}, s54, v{vL16}")
    A("s_nop 4")
    for dr in range(1, 4):
        for h in range(2):
            for tt in range(5):
                c = h * 80 + (dr * 5 + tt) * 4
                A(f"ds_write_b128 v{t+dr}, v[{c}:{c+3}] offset:{(dr-1)*10240 + (h*5+tt)*1024}")
    A(f"s_mul_i32 s54, s3, 30720\nv_add_u32 v{t}, s54, v{vL16}")
    A("s_waitcnt lgkmcnt(0)\ns_barrier")
    for k in range(3):
        for h in range(2):
            for tt in range(5):
                c = h * 80 + ((k + 1) * 5 + tt) * 4
                A(f"ds_read_b128 v[{c}:{c+3}], v{t} offset:{k*10240 + (h*5+tt)*1024}")
    A(f"v_lshlrev_b32 v{t+4}, 16, v{vD}\nv_and_b32 v{t+5}, 0xffff0000, v{vD}\nv_lshlrev_b32 v{t+6}, 16, v{vD+1}\nv_and_b32 v{t+7}, 0xffff0000, v{vD+1}")
    A("s_waitcnt lgkmcnt(0)")
    NL2E = f2u(-1.4426950408889634)
    for tt in range(5):
        g, s = tt * 4, 80 + tt * 4
        for r in range(4):
            A(f"v_add_f32 v{g+r}, v{g+r}, v{g+20+r}\nv_add_f32 v{g+40+r}, v{g+40+r}, v{g+60+r}")
            A(f"v_add_f32 v{s+r}, v{s+r}, v{s+20+r}\nv_add_f32 v{s+40+r}, v{s+40+r}, v{s+60+r}")
        for r in range(4):
            A(f"v_add_f32 v{g+r}, v{g+r}, v{g+40+r}\nv_add_f32 v{s+r}, v{s+r}, v{s+40+r}")
        a, b, c = g + 20, g + 40, g + 60
        A(f"v_cvt_pk_bf16_f32 v{a}, v{g}, v{g+1}\nv_cvt_pk_bf16_f32 v{a+1}, v{g+2}, v{g+3}")
        A(f"v_lshlrev_b32 v{g}, 16, v{a}\nv_and_b32 v{g+1}, 0xffff0000, v{a}\nv_lshlrev_b32 v{g+2}, 16, v{a+1}\nv_and_b32 v{g+3}, 0xffff0000, v{a+1}")
        for r in range(4):
            A(f"v_mul_f32 v{b+r}, {NL2E}, v{g+r}")
        for r in range(4):
            A(f"v_exp_f32 v{b+r}, v{b+r}")
        A(f"v_lshlrev_b32 v{c}, 16, v{vXN+2*tt}\nv_and_b32 v{c+1}, 0xffff0000, v{vXN+2*tt}\nv_lshlrev_b32 v{c+2}, 16, v{vXN+2*tt+1}\nv_and_b32 v{c+3}, 0xffff0000, v{vXN+2*tt+1}")
        for r in range(4):
            A(f"v_add_f32 v{b+r}, 1.0, v{b+r}")
        for r in range(4):
            A(f"v_rcp_f32 v{b+r}, v{b+r}")
        for r in range(4):
            A(f"v_mul_f32 v{c+r}, v{c+r}, v{t+4+r}")
        A(f"v_cvt_pk_bf16_f32 v{a}, v{c}, v{c+1}\nv_cvt_pk_bf16_f32 v{a+1}, v{c+2}, v{c+3}")
        for r in range(4):
            A(f"v_mul_f32 v{g+r}, v{g+r}, v{b+r}")
        A(f"v_lshlrev_b32 v{c}, 16, v{a}\nv_and_b32 v{c+1}, 0xffff0000, v{a}\nv_lshlrev_b32 v{c+2}, 16, v{a+1}\nv_and_b32 v{c+3}, 0xffff0000, v{a+1}")
        A(f"v_cvt_pk_bf16_f32 v{a}, v{g}, v{g+1}\nv_cvt_pk_bf16_f32 v{a+1}, v{g+2}, v{g+3}")
        for r in range(4):
            A(f"v_add_f32 v{s+r}, v{s+r}, v{c+r}")
        A(f"v_lshlrev_b32 v{g}, 16, v{a}\nv_and_b32 v{g+1}, 0xffff0000, v{a}\nv_lshlrev_b32 v{g+2}, 16, v{a+1}\nv_and_b32 v{g+3}, 0xffff0000, v{a+1}")
        A(f"v_lshlrev_b32 v{c}, 16, v{vX+2*tt}\nv_and_b32 v{c+1}, 0xffff0000, v{vX+2*tt}\nv_lshlrev_b32 v{c+2}, 16, v{vX+2*tt+1}\nv_and_b32 v{c+3}, 0xffff0000, v{vX+2*tt+1}")
        for r in range(4):
            A(f"v_fma_f32 v{s+r}, v{s+r}, v{g+r}, v{c+r}")
        A(f"buffer_store_dwordx4 v[{s}:{s+3}], v{vO+tt}, s[48:51], 0 offen")
    if opts.get("stamp"):
        A("s_waitcnt vmcnt(0)")
    stamp(A, opts, 2, 3, 8, 220)
    A("K2_end:\ns_endpgm")
    return kernel_desc("k2_kernel", 224, 72, 96), f"; @launch kernel=k2_kernel grid=(240,1,1) block=(256,1,1) lds={4*4*SL}"


def build(opts):
    A = Asm()
    descs, launches = [], []
    for g in (gen_k0, gen_k1, gen_k2):
        d, l = g(A, opts)
        descs.append(d)
        launches.append(l)
    for extra in opts.get("extra_launches", []):
        launches.append(extra)
    head = "; S5 scan + bilinear GLU block: k0 layernorm/pack, k1 up-projections + scan, k2 down-projections + gate\n"
    out = head + "\n".join(launches) + '\n.amdgcn_target "amdgcn-amd-amdhsa--gfx950"\n' + A.text()
    out += '.section .rodata,"a"\n'
    for d in descs:
        out += ".p2align 6\n" + d
    return out


if __name__ == "__main__":
    opts = {}
    path = f"cdna_kernels/{NAME}.s"
    for a in sys.argv[1:]:
        if a.startswith("out="):
            path = a[4:]
        else:
            k, _, v = a.partition("=")
            opts[k] = int(v) if v else 1
    open(path, "w").write(build(opts))
    print("wrote", path)
```

```python
import sys, struct

NAME = "recurrent_scan__ssm_conv_s5__glu_gated_bilinear__prompt"
XN = 0x0
CP = 0x280000
HO = 0x400000
F0 = 0x440000
F1 = 0x448000
FP = 0x450000
F2 = 0x458000
NONCE = 0x460000
WP = 0x480000
H2 = 0xA00000
EX = 0x2100000
YY = 0x2700000
WS_SZ = 0x2B80000
TS_OFF = 0x3000000
TS = 180 * 1024
OOB = 0x40000000
SPIN = 0x8000
R, STAGE = 4, 36864
TRB = 147456
LOG2E = 1.4426950408889634


def f2u(x):
    return struct.unpack("<I", struct.pack("<f", x))[0]


class Asm:
    def __init__(self, opts):
        self.L = []
        self.opts = opts
        self.nlab = 0

    def __call__(self, s):
        for ln in s.split("\n"):
            ln = ln.strip()
            if ln:
                self.L.append(ln)

    def srd(self, d, base, size):
        self(f"s_mov_b32 s{d}, s{base}\ns_mov_b32 s{d+1}, s{base+1}\ns_mov_b32 s{d+2}, {size}\ns_mov_b32 s{d+3}, 0x20000")

    def label(self, p):
        self.nlab += 1
        return f"{p}_{self.nlab}"

    def emit_dma(self, groups):
        for g in groups:
            for ln in g:
                self(ln)
                if " m0," in ln:
                    self("s_nop 0")

    def stamp(self, slot, vt=220):
        if not self.opts.get("stamp"):
            return
        kidx, sl = slot >> 3, slot & 7
        self(f"s_memrealtime s[98:99]\ns_waitcnt lgkmcnt(0)")
        self(f"s_lshl_b32 s100, s2, 8\ns_add_u32 s100, s100, {TS_OFF + kidx * 0x20000 + sl * 4}")
        self(f"s_lshl_b32 s101, s3, 5\ns_add_u32 s100, s100, s101")
        self(f"v_mov_b32 v{vt}, s100\nv_mov_b32 v{vt+1}, s98")
        self(f"global_store_dword v{vt}, v{vt+1}, s[4:5]")

    def poll(self, vaddr, vdata, soff="0", n=1):
        lab = self.label("poll")
        op = {1: "buffer_load_dword", 4: "buffer_load_dwordx4"}[n]
        dst = f"v{vdata}" if n == 1 else f"v[{vdata}:{vdata+3}]"
        self(f"s_mov_b32 s97, 0\n{lab}:")
        self(f"{op} {dst}, v{vaddr}, s[20:23], {soff} offen sc1\ns_waitcnt vmcnt(0)")
        if n == 4:
            for k in range(4):
                self(f"v_xor_b32 v{vdata+k}, s96, v{vdata+k}")
            self(f"v_or3_b32 v{vdata}, v{vdata}, v{vdata+1}, v{vdata+2}\nv_or_b32 v{vdata}, v{vdata}, v{vdata+3}\nv_cmp_ne_u32 vcc, 0, v{vdata}")
        else:
            self(f"v_cmp_ne_u32 vcc, s96, v{vdata}")
        self(f"s_add_u32 s97, s97, 1\ns_cmp_ge_u32 s97, {SPIN}\ns_cbranch_scc1 {lab}_x\ns_cbranch_vccnz {lab}\n{lab}_x:")

    def flag(self, soff, vt):
        self(f"v_mov_b32 v{vt}, 0\nv_mov_b32 v{vt+1}, s96\ns_mov_b64 exec, 1")
        self(f"buffer_store_dword v{vt+1}, v{vt}, s[20:23], {soff} offen sc1\ns_mov_b64 exec, -1")


vLane16, vXrd, vWrd, vRd5 = 200, 201, 202, 203
vOff = 204
vLr, vLi, vKr, vKi = 209, 210, 211, 212
vP32, vP128, vP512 = 213, 215, 217
vSw = 219
RE, IM = 128, 224
T = 160


def ssm_consts(A, lre, lim, ldt, t0):
    t1, t2, t3 = t0 + 1, t0 + 2, t0 + 3
    L2E = f2u(LOG2E)
    A(f"v_lshlrev_b32 v{lre}, 16, v{lre}\nv_lshlrev_b32 v{lim}, 16, v{lim}\nv_lshlrev_b32 v{ldt}, 16, v{ldt}")
    A(f"v_mul_f32 v{ldt}, {L2E}, v{ldt}\nv_exp_f32 v{ldt}, v{ldt}\ns_nop 0\nv_cvt_pk_bf16_f32 v{ldt}, v{ldt}, v{ldt}\nv_lshlrev_b32 v{ldt}, 16, v{ldt}")
    A(f"v_mul_f32 v{t0}, v{ldt}, v{lre}\nv_mul_f32 v{t1}, v{ldt}, v{lim}")
    A(f"v_mul_f32 v{t0}, {L2E}, v{t0}\nv_exp_f32 v{t0}, v{t0}")
    A(f"v_mul_f32 v{t1}, 0.15915494, v{t1}\nv_rndne_f32 v{t2}, v{t1}\nv_sub_f32 v{t1}, v{t1}, v{t2}")
    A(f"v_cos_f32 v{t2}, v{t1}\nv_sin_f32 v{t3}, v{t1}\ns_nop 0\nv_mul_f32 v{vLr}, v{t0}, v{t2}\nv_mul_f32 v{vLi}, v{t0}, v{t3}")
    A(f"v_mul_f32 v{t0}, v{lre}, v{lre}\nv_fmac_f32 v{t0}, v{lim}, v{lim}\nv_rcp_f32 v{t0}, v{t0}\nv_add_f32 v{t1}, -1.0, v{vLr}")
    A(f"v_add_f32 v{t0}, v{t0}, v{t0}")
    A(f"v_mul_f32 v{t2}, v{t1}, v{lre}\nv_fmac_f32 v{t2}, v{vLi}, v{lim}\nv_mul_f32 v{vKr}, v{t2}, v{t0}")
    A(f"v_mul_f32 v{t2}, v{vLi}, v{lre}\nv_fma_f32 v{t2}, -v{t1}, v{lim}, v{t2}\nv_mul_f32 v{vKi}, v{t2}, v{t0}")
    A(f"v_mov_b32 v{t0}, v{vLr}\nv_sub_f32 v{t1}, 0, v{vLi}")
    for s in range(9):
        A(f"v_mul_f32 v{t2}, v{t1}, v{t1}\nv_mul_f32 v{t3}, v{t0}, v{t1}\nv_fma_f32 v{t0}, v{t0}, v{t0}, -v{t2}\nv_add_f32 v{t1}, v{t3}, v{t3}")
        dst = {4: vP32, 6: vP128, 8: vP512}.get(s)
        if dst:
            A(f"v_mov_b32 v{dst}, v{t0}\nv_mov_b32 v{dst+1}, v{t1}")


def gather4(A, b0, b1):
    for bb in (b0, b1):
        A(f"v_mov_b32 v{bb+2}, v{bb}")
    A("s_nop 1")
    for bb in (b0, b1):
        A(f"v_permlane32_swap_b32 v{bb}, v{bb+2}")
    for bb in (b0, b1):
        A(f"v_mov_b32 v{bb+1}, v{bb}\nv_mov_b32 v{bb+3}, v{bb+2}")
    A("s_nop 1")
    for bb in (b0, b1):
        A(f"v_permlane16_swap_b32 v{bb}, v{bb+1}\nv_permlane16_swap_b32 v{bb+2}, v{bb+3}")
    A("s_nop 1")


def horner(A, dr, di, P, xs, tmp):
    cur = xs[0]
    for n, x in enumerate(xs[1:]):
        o = (dr, di) if n == len(xs) - 2 else (tmp + 2 * (n & 1), tmp + 2 * (n & 1) + 1)
        A(f"v_fma_f32 v{o[0]}, v{P}, v{cur[0]}, v{x[0]}\nv_fma_f32 v{o[1]}, v{P}, v{cur[1]}, v{x[1]}")
        A(f"v_fma_f32 v{o[0]}, -v{P+1}, v{cur[1]}, v{o[0]}\nv_fma_f32 v{o[1]}, v{P+1}, v{cur[0]}, v{o[1]}")
        cur = o


Er, Ei, PUB, vA = T + 4, T + 8, T + 12, T + 16


def scan_pass1(A):
    a, b = (T, T + 1), (T + 2, T + 3)
    A(f"v_mov_b32 v{T}, v{RE}\nv_mov_b32 v{T+1}, v{IM}")
    for t in range(1, 32):
        A(f"v_fma_f32 v{b[0]}, v{vLr}, v{a[0]}, v{RE+t}\nv_fma_f32 v{b[1]}, v{vLr}, v{a[1]}, v{IM+t}")
        A(f"v_fma_f32 v{b[0]}, -v{vLi}, v{a[1]}, v{b[0]}\nv_fma_f32 v{b[1]}, v{vLi}, v{a[0]}, v{b[1]}")
        a, b = b, a
    A(f"v_mul_f32 v{Er}, v{vKr}, v{a[0]}\nv_mul_f32 v{Ei}, v{vKr}, v{a[1]}")
    A(f"v_fma_f32 v{Er}, -v{vKi}, v{a[1]}, v{Er}\nv_fma_f32 v{Ei}, -v{vKi}, v{a[0]}, -v{Ei}")
    gather4(A, Er, Ei)
    horner(A, PUB, PUB + 2, vP32, [(Er + n, Ei + n) for n in range(4)], T)
    A(f"v_mov_b32 v{PUB+1}, s96\nv_mov_b32 v{PUB+3}, s96")
    A(f"s_lshl_b32 s37, s62, 12\ns_add_u32 s37, s37, {HO}\ns_lshl_b32 s36, s55, 8\ns_add_u32 s36, s36, s37")
    A(f"v_and_b32 v{vA}, 0xf0, v{vLane16}\nv_lshrrev_b32 v{vA+1}, 8, v{vLane16}\nv_lshl_add_u32 v{vA+2}, v{vA+1}, 28, v{vA}")
    A(f"buffer_store_dwordx4 v[{PUB}:{PUB+3}], v{vA+2}, s[20:23], s36 offen sc1")
    A(f"s_sub_u32 s18, s55, 16\nv_lshl_add_u32 v{vA+1}, v{vA+1}, 2, s18\nv_mov_b32 v{vA+3}, s96")
    for n in range(4):
        A(f"v_add_u32 v{vA+2}, {n}, v{vA+1}\nv_cmp_le_i32 vcc, 0, v{vA+2}\nv_lshl_add_u32 v{vA+2}, v{vA+2}, 8, v{vA}")
        A(f"v_mov_b32 v{vA+4+n}, {OOB}\nv_cndmask_b32 v{vA+8+n}, 0, v{vA+3}, vcc\nv_cndmask_b32 v{vA+4+n}, v{vA+4+n}, v{vA+2}, vcc")
    for t in range(32):
        x = T + 2 * (t & 1)
        A(f"v_mul_f32 v{x}, v{vKr}, v{RE+t}\nv_mul_f32 v{x+1}, v{vKi}, v{RE+t}")
        A(f"v_fma_f32 v{RE+t}, -v{vKi}, v{IM+t}, v{x}\nv_fma_f32 v{IM+t}, -v{vKr}, v{IM+t}, -v{x+1}")


def scan_poll(A):
    G0 = 32
    lab = A.label("spoll")
    A(f"s_mov_b32 s97, 0\n{lab}:")
    for n in range(4):
        A(f"buffer_load_dwordx4 v[{G0+4*n}:{G0+4*n+3}], v{vA+4+n}, s[20:23], s37 offen sc1")
    A("s_waitcnt vmcnt(0)")
    A(f"v_xor_b32 v{T}, v{G0+1}, v{vA+8}\nv_xor_b32 v{T+1}, v{G0+3}, v{vA+8}\nv_or_b32 v{T}, v{T}, v{T+1}")
    for n in range(1, 4):
        A(f"v_xor_b32 v{T+1}, v{G0+4*n+1}, v{vA+8+n}\nv_xor_b32 v{T+2}, v{G0+4*n+3}, v{vA+8+n}\nv_or3_b32 v{T}, v{T}, v{T+1}, v{T+2}")
    A(f"v_cmp_ne_u32 vcc, 0, v{T}\ns_add_u32 s97, s97, 1\ns_cmp_ge_u32 s97, {SPIN}\ns_cbranch_scc1 {lab}_x\ns_cbranch_vccnz {lab}\n{lab}_x:")


def scan_pass2(A, ldsbase):
    G0, Sr, Si, Cr, Ci = 32, 48, 52, 56, 57
    hr, hi = T, T + 1
    horner(A, Sr, Si, vP128, [(G0 + 4 * n, G0 + 4 * n + 2) for n in range(4)], T)
    gather4(A, Sr, Si)
    horner(A, Cr, Ci, vP512, [(Sr + n, Si + n) for n in range(4)], T)
    A(f"v_lshrrev_b32 v{vA}, 8, v{vLane16}\nv_mov_b32 v{hr}, v{Cr}\nv_mov_b32 v{hi}, v{Ci}")
    cur = (Cr, Ci)
    for n in range(3):
        o = (58 + 2 * n, 59 + 2 * n)
        A(f"v_cmp_eq_u32 vcc, {n+1}, v{vA}")
        A(f"v_fma_f32 v{o[0]}, v{vP32}, v{cur[0]}, v{Er+n}\nv_fma_f32 v{o[1]}, v{vP32}, v{cur[1]}, v{Ei+n}")
        A(f"v_fma_f32 v{o[0]}, -v{vP32+1}, v{cur[1]}, v{o[0]}\nv_fma_f32 v{o[1]}, v{vP32+1}, v{cur[0]}, v{o[1]}")
        A(f"v_cndmask_b32 v{hr}, v{hr}, v{o[0]}, vcc\nv_cndmask_b32 v{hi}, v{hi}, v{o[1]}, vcc")
        cur = o
    vW, vR = vA + 1, vA + 2
    A(f"v_lshlrev_b32 v{vW}, 11, v{vA}\nv_bfe_u32 v{vR}, v{vLane16}, 4, 4\nv_lshl_add_u32 v{vW}, v{vR}, 2, v{vW}\nv_add_u32 v{vW}, {ldsbase}, v{vW}")
    A(f"v_lshrrev_b32 v{vA+3}, 2, v{vR}\nv_lshlrev_b32 v{vA+3}, 11, v{vA+3}\nv_and_b32 v{vR}, 3, v{vR}\nv_lshl_add_u32 v{vR}, v{vR}, 6, v{vA+3}")
    A(f"v_lshl_add_u32 v{vR}, v{vA}, 4, v{vR}\nv_add_u32 v{vR}, {ldsbase}, v{vR}")
    a = (hr, hi)
    for t in range(32):
        A(f"v_fma_f32 v{RE+t}, v{vLr}, v{a[0]}, v{RE+t}\nv_fma_f32 v{IM+t}, v{vLr}, v{a[1]}, v{IM+t}")
        A(f"v_fma_f32 v{RE+t}, v{vLi}, v{a[1]}, v{RE+t}\nv_fma_f32 v{IM+t}, -v{vLi}, v{a[0]}, v{IM+t}")
        a = (RE + t, IM + t)
        x = T + 2 + (t & 3)
        A(f"v_cvt_pk_bf16_f32 v{x}, v{RE+t}, v{IM+t}\nds_write_b32 v{vW}, v{x} offset:{64*t}")
    A(f"s_add_u32 s36, s62, 144\ns_lshl_b32 s36, s36, 10\ns_add_u32 s36, s36, s88")
    A("s_waitcnt lgkmcnt(0)")
    for m in range(8):
        A(f"ds_read_b128 v[{96+4*m}:{99+4*m}], v{vR} offset:{256*m}")
    for m in range(8):
        A(f"s_waitcnt lgkmcnt({7-m})\nbuffer_store_dwordx4 v[{96+4*m}:{99+4*m}], v{vLane16}, s[20:23], s36 offen sc1\ns_add_u32 s36, s36, {TS}")


def ring_loop(A, name, nst, mf, reads, dma, advregs, stage, ring, vm, barpos, hooks=None, cut=None):
    adv = [f"s_add_u32 s47, s47, {stage}", f"s_cmp_eq_u32 s47, {ring*stage}", f"s_cselect_b32 s48, {-(ring-1)*stage & 0xffffffff}, s50",
           "s_cselect_b32 s47, 0, s47"] + [f"v_add_u32 v{r}, s48, v{r}" for r in advregs]
    A(f"s_mov_b32 s47, 0\ns_mov_b32 s50, {stage}\ns_mov_b32 s49, 0")
    for ln in reads(0):
        A(ln)
    A(f".p2align 6\n{name}:")
    if hooks:
        for val, lab in hooks:
            A(f"s_cmp_eq_u32 s49, {val}\ns_cbranch_scc1 {lab}\n{lab}_ret:")
    for par in (0, 1):
        M = mf(par)
        nm = len(M)
        fill = [[] for _ in range(nm)]
        for i, ln in enumerate(adv):
            fill[min(i // 3, barpos)].append(ln)
        if cut:
            fill[barpos] += [f"s_cmp_ge_u32 s49, {nst - ring - par}"] + [f"s_cselect_b32 s{c}, 0, s{c}" for c in cut]
        fill[barpos] += [f"s_waitcnt vmcnt({vm})", "s_barrier"]
        rd = reads(par ^ 1)
        span = nm - 2 - barpos
        for i, ln in enumerate(rd):
            fill[barpos + (i * span) // len(rd)].append(ln)
        for i, g in enumerate(dma):
            pos = barpos + 2 + (i * (nm - 2 - barpos)) // len(dma)
            for ln in g:
                fill[pos - 1 if " m0," in ln else pos].append(ln)
        A("s_waitcnt lgkmcnt(0)")
        for t in range(nm):
            A(M[t])
            for ln in fill[t]:
                A(ln)
    A(f"s_add_u32 s49, s49, 2\ns_cmp_lt_u32 s49, {nst}\ns_cbranch_scc1 {name}")


def gen(opts):
    A = Asm(opts)
    K = NAME + "_kernel"
    A(f".text\n.globl {K}\n.p2align 8\n.type {K},@function\n{K}:")
    A("s_cmp_ge_u32 s2, 256\ns_cbranch_scc1 L_end")
    A("s_load_dwordx2 s[52:53], s[0:1], 0\ns_load_dwordx2 s[4:5], s[0:1], 120")
    A("s_load_dwordx4 s[64:67], s[0:1], 80\ns_load_dwordx4 s[8:11], s[0:1], 24\ns_load_dwordx4 s[56:59], s[0:1], 8\ns_load_dwordx2 s[60:61], s[0:1], 56")
    A("s_load_dwordx4 s[68:71], s[0:1], 40\ns_load_dwordx2 s[72:73], s[0:1], 96")
    vT = 176
    A(f"v_lshrrev_b32 v{vT+1}, 6, v0\nv_and_b32 v{vT}, 63, v0\nv_readfirstlane_b32 s3, v{vT+1}")
    A(f"v_lshlrev_b32 v{vLane16}, 4, v{vT}")
    A("s_and_b32 s12, s2, 7\ns_lshr_b32 s13, s2, 3\ns_and_b32 s14, s13, 7\ns_lshr_b32 s13, s13, 3\ns_lshl_b32 s12, s12, 2\ns_add_u32 s15, s12, s13")
    A("s_and_b32 s16, s3, 1\ns_lshr_b32 s17, s3, 1")
    A("s_lshl_b32 s51, s14, 5\ns_add_u32 s51, s51, s15\ns_lshl_b32 s51, s51, 2\ns_add_u32 s51, s51, s3")
    X0 = 0
    A(f"s_lshl_b32 s18, s51, 1\nv_lshrrev_b32 v{vT+1}, 5, v{vT}\nv_add_u32 v{vT+2}, s18, v{vT+1}\nv_and_b32 v{vT+3}, 31, v{vT}")
    A(f"v_mul_u32_u24 v{vT+4}, 1152, v{vT+2}\nv_lshl_add_u32 v{vT+4}, v{vT+3}, 4, v{vT+4}")
    A("s_mov_b32 s74, 0xff\ns_mov_b32 s75, 0xff")
    for r in range(8, 12):
        A(f"v_mov_b32 v{r}, 0")
    A("s_waitcnt lgkmcnt(0)")
    A.srd(24, 52, 2359296)
    A(f"buffer_load_dwordx4 v[0:3], v{vT+4}, s[24:27], 0 offen\nbuffer_load_dwordx4 v[4:7], v{vT+4}, s[24:27], 0 offen offset:512")
    A(f"s_mov_b64 exec, s[74:75]\nbuffer_load_dwordx4 v[8:11], v{vT+4}, s[24:27], 0 offen offset:1024\ns_mov_b64 exec, -1")
    A(f"s_add_u32 s18, s4, {NONCE}\ns_addc_u32 s19, s5, 0\ns_load_dword s96, s[18:19], 0")
    A.stamp(0)
    A.srd(20, 4, WS_SZ)
    A("s_mul_i32 s35, s16, 5\ns_mov_b32 s42, 3641")
    for n in range(5):
        c, p, jx, k = vT + 5, vT + 6, vT + 7, vT + 8
        A(f"s_add_u32 s36, s35, {n}\ns_lshl_b32 s36, s36, 6\nv_add_u32 v{c}, s36, v{vT}")
        A(f"v_mul_lo_u32 v{p}, v{c}, s42\nv_lshrrev_b32 v{p}, 16, v{p}")
        A(f"v_mul_u32_u24 v{jx}, 18, v{p}\nv_sub_u32 v{jx}, v{c}, v{jx}")
        A(f"v_bfe_u32 v{k}, v{p}, 2, 2\nv_lshlrev_b32 v{k}, 3, v{k}\nv_lshrrev_b32 v{c}, 4, v{p}\nv_lshl_add_u32 v{k}, v{c}, 2, v{k}\nv_and_b32 v{c}, 3, v{p}\nv_add_u32 v{k}, v{k}, v{c}")
        A(f"v_mul_u32_u24 v{k}, 9216, v{k}\nv_lshl_add_u32 v{vOff+n}, v{jx}, 4, v{k}")
        if 0 < n < 4:
            A(f"v_subrev_u32 v{vOff+n}, {n*1024}, v{vOff+n}")

    def bsrc(dst, lane, t):
        A(f"v_lshrrev_b32 v{dst}, 2, v{lane}\nv_lshrrev_b32 v{t}, 4, v{lane}\nv_sub_u32 v{t}, 4, v{t}\nv_xor_b32 v{t}, v{t}, v{lane}\nv_and_b32 v{t}, 3, v{t}")
        A(f"v_mul_u32_u24 v{dst}, 1152, v{dst}\nv_lshl_add_u32 v{dst}, v{t}, 4, v{dst}")
    bsrc(vT + 5, vT, vT + 6)
    A(f"s_cmp_eq_u32 s16, 1\ns_cselect_b64 vcc, -1, 0\nv_cndmask_b32 v{vOff+4}, v{vOff+4}, v{vT+5}, vcc")
    A("s_cmp_eq_u32 s17, 1\ns_cselect_b32 s24, s66, s64\ns_cselect_b32 s25, s67, s65\ns_mov_b32 s26, 5308416\ns_mov_b32 s27, 0x20000")
    A("s_cselect_b32 s32, s10, s8\ns_cselect_b32 s33, s11, s9")
    A("s_cmp_eq_u32 s16, 1\ns_cselect_b32 s28, s32, s24\ns_cselect_b32 s29, s33, s25\ns_cselect_b32 s30, 663552, s26\ns_mov_b32 s31, 0x20000")
    A("s_cselect_b32 s41, 64, 294912")
    A("s_mul_i32 s38, s14, 294912\ns_lshl_b32 s36, s3, 12\ns_add_u32 s38, s38, s36")
    A("s_mul_i32 s39, s15, 288")
    A("s_mul_i32 s40, s15, 18432\ns_cmp_eq_u32 s16, 1\ns_cselect_b32 s40, s40, s39")
    A("s_lshl_b32 s43, s3, 12")
    A("s_mul_i32 s44, s17, 10240\ns_lshl_b32 s36, s35, 10\ns_add_u32 s44, s44, s36\ns_add_u32 s44, s44, 16384")
    A("s_add_u32 s45, s44, 4096\ns_mov_b32 s46, 0")
    slotadv = f"s_add_u32 s46, s46, {STAGE}\ns_cmp_eq_u32 s46, {R*STAGE}\ns_cselect_b32 s46, 0, s46"

    def dmaX():
        G = []
        for x in range(4):
            g = []
            if x == 0:
                g.append("s_add_u32 m0, s46, s43")
            g.append(f"buffer_load_dwordx4 v{vLane16}, s[20:23], s38 offen offset:{x*1024} sc1 lds")
            if x == 3:
                g.append("s_add_u32 s38, s38, 16384")
            G.append(g)
        return G

    def dmaW():
        G = []
        for n in range(5):
            g = []
            if n == 0:
                g.append("s_add_u32 m0, s46, s44")
            if n == 4:
                g.append("s_add_u32 m0, s46, s45")
                g.append(f"buffer_load_dwordx4 v{vOff+n}, s[28:31], s40 offen lds")
                g.append("s_add_u32 s40, s40, s41")
            else:
                g.append(f"buffer_load_dwordx4 v{vOff+n}, s[24:27], s39 offen offset:{n*1024} lds")
                if n == 3:
                    g.append("s_add_u32 s39, s39, 294912")
            G.append(g)
        return G
    for st in range(R):
        A.emit_dma(dmaW())
        A(slotadv)
    A.srd(76, 56, 1152)
    A.srd(80, 58, 1152)
    A.srd(84, 60, 1152)
    A("s_mov_b32 s62, s15")
    cL = 192
    A(f"v_and_b32 v{vT+5}, 15, v{vT}\ns_lshl_b32 s18, s62, 4\nv_add_lshl_u32 v{vT+5}, v{vT+5}, s18, 1")
    A(f"buffer_load_ushort v{cL}, v{vT+5}, s[76:79], 0 offen\nbuffer_load_ushort v{cL+1}, v{vT+5}, s[80:83], 0 offen\nbuffer_load_ushort v{cL+2}, v{vT+5}, s[84:87], 0 offen")
    A("s_waitcnt vmcnt(23)")
    F = 16
    for e in range(12):
        A(f"v_lshlrev_b32 v{F+2*e}, 16, v{e}\nv_and_b32 v{F+2*e+1}, 0xffff0000, v{e}")
    A(f"v_add_f32 v40, v{F}, v{F+1}\nv_add_f32 v41, v{F+2}, v{F+3}\nv_add_f32 v42, v{F+4}, v{F+5}\nv_add_f32 v43, v{F+6}, v{F+7}")
    for e in range(8, 24):
        A(f"v_add_f32 v{40+(e&3)}, v{40+(e&3)}, v{F+e}")
    A("v_add_f32 v40, v40, v41\nv_add_f32 v42, v42, v43\nv_add_f32 v40, v40, v42")

    def red32(r, t):
        for k in (8, 4, 2, 1):
            A(f"s_nop 1\nv_add_f32_dpp v{r}, v{r}, v{r} row_ror:{k} row_mask:0xf bank_mask:0xf")
        A(f"v_mov_b32 v{t}, v{r}\ns_nop 1\nv_permlane16_swap_b32 v{r}, v{t}\nv_add_f32 v{r}, v{r}, v{t}")
    red32(40, 41)
    A(f"v_mul_f32 v40, {f2u(1/576.0)}, v40\nv_mov_b32 v42, 0\nv_mov_b32 v43, 0")
    for e in range(24):
        if e == 16:
            A("s_mov_b64 exec, s[74:75]")
        t = 44 + (e & 3)
        A(f"v_sub_f32 v{t}, v{F+e}, v40\nv_fmac_f32 v{42+(e&1)}, v{t}, v{t}")
    A("s_mov_b64 exec, -1\nv_add_f32 v41, v42, v43")
    red32(41, 42)
    A(f"v_mul_f32 v41, {f2u(1/576.0)}, v41")
    A("v_cvt_pk_bf16_f32 v42, v40, v41\nv_lshlrev_b32 v40, 16, v42\nv_and_b32 v41, 0xffff0000, v42")
    A(f"v_add_f32 v41, {f2u(1e-5)}, v41\nv_cvt_pk_bf16_f32 v41, v41, v41\nv_lshlrev_b32 v41, 16, v41\nv_sqrt_f32 v41, v41\ns_nop 0")
    A("v_cvt_pk_bf16_f32 v41, v41, v41\nv_lshlrev_b32 v41, 16, v41\nv_rcp_f32 v41, v41")
    u, c = vT + 2, vT + 3
    s0, s1, s2_ = vT + 5, vT + 6, vT + 7
    A(f"v_bfe_u32 v{s0}, v{u}, 5, 2\nv_sub_u32 v{s1}, 4, v{s0}\nv_xor_b32 v{s1}, v{s1}, v{c}\nv_and_b32 v{s1}, 3, v{s1}")
    A(f"v_and_b32 v{s2_}, 3, v{u}\nv_lshl_add_u32 v{s0}, v{s0}, 2, v{s2_}\nv_lshl_add_u32 v{s0}, v{s0}, 2, v{s1}\nv_lshlrev_b32 v{s0}, 4, v{s0}")
    A(f"v_bfe_u32 v{s1}, v{u}, 7, 1\nv_bfe_u32 v{s2_}, v{u}, 2, 3\nv_lshl_add_u32 v{s1}, v{s1}, 3, v{s2_}\nv_lshl_add_u32 v{s0}, v{s1}, 10, v{s0}")
    A(f"v_lshrrev_b32 v{s1}, 2, v{c}\nv_lshl_add_u32 v{s0}, v{s1}, 14, v{s0}\ns_mul_i32 s18, s14, 294912")
    for n in range(3):
        if n == 2:
            A("s_mov_b64 exec, s[74:75]")
        for e in range(8 * n, 8 * n + 8):
            A(f"v_sub_f32 v{F+e}, v{F+e}, v40")
        for e in range(4 * n, 4 * n + 4):
            A(f"v_cvt_pk_bf16_f32 v{e}, v{F+2*e}, v{F+2*e+1}")
        for e in range(4 * n, 4 * n + 4):
            A(f"v_lshlrev_b32 v{F+2*e}, 16, v{e}\nv_and_b32 v{F+2*e+1}, 0xffff0000, v{e}")
        for e in range(8 * n, 8 * n + 8):
            A(f"v_mul_f32 v{F+e}, v{F+e}, v41")
        for e in range(4 * n, 4 * n + 4):
            A(f"v_cvt_pk_bf16_f32 v{e}, v{F+2*e}, v{F+2*e+1}")
        A(f"buffer_store_dwordx4 v[{4*n}:{4*n+3}], v{s0}, s[20:23], s18 offen sc1\ns_add_u32 s18, s18, 131072")
    A("s_mov_b64 exec, -1")
    A.stamp(1)
    for i in range(160):
        A(f"v_accvgpr_write_b32 a{i}, 0")
    A("s_waitcnt vmcnt(0) lgkmcnt(0)\ns_mul_i32 s96, s96, 1664525\ns_add_u32 s96, s96, 1013904223")
    A(f"s_lshl_b32 s18, s51, 5\ns_add_u32 s18, s18, {F0}")
    A.flag("s18", vT + 5)
    A.stamp(2)
    for i in range(160):
        A(f"v_mov_b32 v{i}, 0")
    ssm_consts(A, cL, cL + 1, cL + 2, vT + 5)
    A(f"v_and_b32 v{vT+5}, 15, v{vT}\nv_lshrrev_b32 v{vT+6}, 2, v{vT+5}\nv_sub_u32 v{vT+6}, 4, v{vT+6}\nv_lshrrev_b32 v{vT+7}, 4, v{vT}\nv_xor_b32 v{vT+6}, v{vT+6}, v{vT+7}\nv_and_b32 v{vT+6}, 3, v{vT+6}")
    A(f"v_lshl_add_u32 v{vT+5}, v{vT+5}, 2, v{vT+6}\nv_lshlrev_b32 v{vSw}, 4, v{vT+5}")
    A(f"s_lshl_b32 s36, s17, 13\nv_add_u32 v{vXrd}, s36, v{vSw}")
    A(f"v_lshrrev_b32 v{vT+5}, 2, v{vT}\nv_mul_u32_u24 v{vT+5}, 288, v{vT+5}\nv_and_b32 v{vT+6}, 3, v{vT}\nv_lshl_add_u32 v{vT+5}, v{vT+6}, 3, v{vT+5}")
    A("s_and_b32 s18, s15, 1\ns_cmp_eq_u32 s18, 0\ns_cselect_b32 s36, 4, 1\ns_cselect_b32 s37, 0, 5\ns_cselect_b32 s19, 8, 0")
    A("s_cmp_eq_u32 s16, 0\ns_cselect_b32 s54, s36, s37")
    A(f"s_lshl_b32 s36, s54, 5\ns_add_u32 s36, s36, 16384\nv_add_u32 v{vWrd}, s36, v{vT+5}")
    A(f"s_lshl_b32 s36, s19, 5\ns_add_u32 s36, s36, 16384\nv_add_u32 v{vRd5}, s36, v{vT+5}")
    A(f"v_add_u32 v{vT+5}, {16384+9216}, v{vSw}")
    A(f"s_cmp_eq_u32 s16, 1\ns_cselect_b64 vcc, -1, 0\nv_cndmask_b32 v{vRd5}, v{vRd5}, v{vT+5}, vcc")
    vPW, vPC = 240, 243
    A("s_mov_b32 s42, 5462")
    for n in range(3):
        z, p, q = vT + 5, vT + 6, vT + 7
        A(f"v_add_u32 v{z}, {64*n}, v{vT}\nv_mul_lo_u32 v{p}, v{z}, s42\nv_lshrrev_b32 v{p}, 16, v{p}\nv_mul_u32_u24 v{q}, 12, v{p}\nv_sub_u32 v{z}, v{z}, v{q}")
        A(f"v_lshrrev_b32 v{q}, 1, v{p}\nv_and_b32 v{q}, 2, v{q}\nv_xor_b32 v{z}, v{z}, v{q}\nv_mul_u32_u24 v{p}, 1152, v{p}\nv_lshl_add_u32 v{vPW+n}, v{z}, 4, v{p}")
    A(f"v_and_b32 v{vT+5}, 15, v{vT}\nv_mul_u32_u24 v{vT+5}, 1152, v{vT+5}\nv_lshrrev_b32 v{vT+6}, 4, v{vT}\nv_lshl_add_u32 v{vPC}, v{vT+6}, 3, v{vT+5}")
    A.srd(76, 72, 5308416)
    A.srd(80, 68, 663552)
    A.srd(84, 70, 663552)
    A(f"v_bfe_u32 v{vT+5}, v{vT}, 3, 2\nv_and_b32 v{vT+6}, 7, v{vT}\nv_lshl_add_u32 v{vT+5}, v{vT+5}, 4, v{vT+6}\nv_lshlrev_b32 v{vT+5}, 5, v{vT+5}")
    A(f"s_lshl_b32 s18, s14, 12\ns_lshl_b32 s19, s17, 11\ns_add_u32 s18, s18, s19\ns_lshl_b32 s19, s16, 8\ns_add_u32 s18, s18, s19\ns_add_u32 s18, s18, {F0}")
    A.poll(vT + 5, vT + 6, "s18")
    A.stamp(3)
    A(f"v_mov_b32 v{vT+5}, {OOB}")
    for st in range(R):
        A.emit_dma(dmaX())
        A(slotadv)
        if st in (1, 2):
            for _ in range(5):
                A(f"buffer_load_dword v222, v{vT+5}, s[20:23], 0 offen")
    NM, GV, WV, XA = 8, 0, 160, 160
    D = dmaX() + dmaW()
    D[-1].append(slotadv)
    nd = len(D)

    def wreads(role, jj):
        u, isU = jj >> 1, jj & 1
        base = WV + 4 * jj
        if u == 4:
            if role == 1:
                return [f"ds_read_b128 v[{base}:{base+3}], v{vRd5} offset:{isU*10240}"]
            return [f"ds_read_b64_tr_b16 v[{base+2*t}:{base+2*t+1}], v{vRd5} offset:{isU*10240 + t*16*288}" for t in range(2)]
        return [f"ds_read_b64_tr_b16 v[{base+2*t}:{base+2*t+1}], v{vWrd} offset:{isU*10240 + u*32 + t*16*288}" for t in range(2)]

    def xread(par, m):
        b = XA + (par * NM + m) * 4
        return f"ds_read_b128 a[{b}:{b+3}], v{vXrd} offset:{m*1024}"

    def mfma(role, jj, m, par):
        u, isU = jj >> 1, jj & 1
        c = (u * NM + m) * 4
        acc = f"a[{c}:{c+3}]" if isU else f"v[{GV+c}:{GV+c+3}]"
        w = f"v[{WV+4*jj}:{WV+4*jj+3}]"
        xb = XA + (par * NM + m) * 4
        x = f"a[{xb}:{xb+3}]"
        if role == 1 and u == 4:
            return f"v_mfma_f32_16x16x32_bf16 {acc}, {x}, {w}, {acc}"
        return f"v_mfma_f32_16x16x32_bf16 {acc}, {w}, {x}, {acc}"

    adv = [f"s_add_u32 s47, s47, {STAGE}", f"s_cmp_eq_u32 s47, {R*STAGE}", f"s_cselect_b32 s48, {-(R-1)*STAGE & 0xffffffff}, s50",
           "s_cselect_b32 s47, 0, s47", f"v_add_u32 v{vXrd}, s48, v{vXrd}", f"v_add_u32 v{vWrd}, s48, v{vWrd}", f"v_add_u32 v{vRd5}, s48, v{vRd5}"]
    A(f"s_mov_b32 s47, 0\ns_mov_b32 s50, {STAGE}\ns_mov_b32 s49, 0")
    A("s_waitcnt vmcnt(22)\ns_barrier")
    for m in range(NM):
        A(xread(0, m))
    for jj in range(8):
        for ln in wreads(0, jj):
            A(ln)
    A("s_cmp_eq_u32 s16, 1\ns_cbranch_scc1 P1_role1")
    PL, PSV = opts.get("packload", 2), opts.get("packstore", 8)
    for role in (0, 1):
        A(f"P1_role{role}:")
        for jj in (8, 9):
            for ln in wreads(role, jj):
                A(ln)
        A("s_waitcnt lgkmcnt(0)")
        A.stamp(4)
        A(f".p2align 6\nP1_loop{role}:")
        for par in (0, 1):
            nm = 10 * NM
            fill = [[] for _ in range(nm)]
            for i, ln in enumerate(adv):
                fill[min(i // 2, NM - 2)].append(ln)
            fill[NM - 1].append(f"s_waitcnt vmcnt({(R-2)*nd}) lgkmcnt(0)")
            fill[NM - 1].append("s_barrier")
            for jj in range(10):
                for t, ln in enumerate(wreads(role, jj)):
                    pos = (jj + 1) * NM - 1 + t
                    fill[min(pos, nm - 1)].append(ln)
            for m in range(NM):
                fill[(1 + m) * NM + 2].append(xread(par ^ 1, m))
            for i, g in enumerate(D):
                pos = (1 + i) * NM + NM // 2
                for ln in g:
                    fill[pos - 1 if " m0," in ln else pos].append(ln)
            if par == 0:
                fill[NM + 1].append(f"s_cmp_eq_u32 s49, {PL}\ns_cbranch_scc1 P1_pl{role}\nP1_pl{role}_ret:")
                fill[NM + 2].append(f"s_cmp_eq_u32 s49, {PSV}\ns_cbranch_scc1 P1_ps{role}\nP1_ps{role}_ret:")
            seq = [ln for f in fill for ln in f if ln.startswith("ds_read")]
            lastx = max(i for i, ln in enumerate(seq) if " a[" in ln)
            A(f"s_waitcnt lgkmcnt({len(seq) - 1 - lastx})")
            for t in range(nm):
                A(mfma(role, t // NM, t % NM, par))
                for ln in fill[t]:
                    A(ln)
        A(f"s_add_u32 s49, s49, 2\ns_cmp_lt_u32 s49, 18\ns_cbranch_scc1 P1_loop{role}")
        A("s_branch P1_epi")
    for role in (0, 1):
        A(f"P1_pl{role}:")
        A("s_mul_i32 s12, s51, 10923\ns_lshr_b32 s12, s12, 16\ns_mul_i32 s13, s12, 6\ns_sub_u32 s13, s51, s13")
        A("s_mul_i32 s18, s12, 36864\ns_mul_i32 s19, s13, 192\ns_add_u32 s18, s18, s19\ns_add_u32 s19, s18, 18432")
        for n in range(6):
            A(f"buffer_load_dwordx4 a[{224+4*n}:{227+4*n}], v{vPW+n%3}, s[76:79], s{18 + n//3} offen")
        for k in range(2):
            A(f"s_add_u32 s18, s51, {1024*k}\ns_mul_i32 s19, s18, 1821\ns_lshr_b32 s19, s19, 16\ns_mul_i32 s34, s19, 36\ns_sub_u32 s34, s18, s34")
            A(f"s_mul_i32 s34, s34, 18432\ns_lshl_b32 s19, s19, 5\ns_add_u32 s19, s19, s34\ns_cmp_ge_u32 s18, 1296\ns_cselect_b32 s19, {OOB}, s19")
            A(f"buffer_load_dwordx2 v[{224+4*k}:{225+4*k}], v{vPC}, s[80:83], s19 offen\nbuffer_load_dwordx2 v[{226+4*k}:{227+4*k}], v{vPC}, s[84:87], s19 offen")
        A(f"s_branch P1_pl{role}_ret")
        A(f"P1_ps{role}:")
        A(f"s_mul_i32 s18, s13, 144\ns_add_u32 s18, s18, s12\ns_mul_i32 s18, s18, 6144\ns_add_u32 s18, s18, {WP}\ns_cmp_ge_u32 s51, 864\ns_cselect_b32 s18, {OOB}, s18\ns_add_u32 s19, s18, 3072")
        for n in range(6):
            A(f"buffer_store_dwordx4 a[{224+4*n}:{227+4*n}], v{vLane16}, s[20:23], s{18 + n//3} offen offset:{(n%3)*1024} sc1")
        A("s_mov_b32 s34, 0x05040100\ns_mov_b32 s35, 0x07060302")
        for k in range(2):
            i0, o = 224 + 4 * k, 232 + 4 * k
            A(f"v_perm_b32 v{o}, v{i0+2}, v{i0}, s34\nv_perm_b32 v{o+1}, v{i0+2}, v{i0}, s35\nv_perm_b32 v{o+2}, v{i0+3}, v{i0+1}, s34\nv_perm_b32 v{o+3}, v{i0+3}, v{i0+1}, s35")
            A(f"s_add_u32 s18, s51, {1024*k}\ns_lshl_b32 s19, s18, 10\ns_add_u32 s19, s19, {CP}\ns_cmp_ge_u32 s18, 1296\ns_cselect_b32 s19, {OOB}, s19")
            A(f"buffer_store_dwordx4 v[{o}:{o+3}], v{vLane16}, s[20:23], s19 offen sc1")
        A(f"s_branch P1_ps{role}_ret")
    A("P1_epi:")
    A("s_waitcnt vmcnt(0) lgkmcnt(0)\ns_barrier")
    A.stamp(5)
    A("s_cmp_lg_u32 s3, 0\ns_cbranch_scc1 P1_nofp")
    A(f"s_lshl_b32 s18, s2, 2\ns_add_u32 s18, s18, {FP}")
    A.flag("s18", T)
    A("P1_nofp:")
    A(f"s_lshl_b32 s36, s14, 1\ns_add_u32 s55, s36, s17\ns_mul_i32 s88, s55, {8*TS}\ns_add_u32 s88, s88, {H2}")
    A("s_lshr_b32 s36, s15, 1\ns_mul_i32 s36, s36, 9\ns_and_b32 s18, s15, 1\ns_mul_i32 s37, s18, 9\ns_add_u32 s37, s37, s54\ns_lshr_b32 s37, s37, 1")
    A("s_add_u32 s37, s37, s36\ns_lshl_b32 s37, s37, 10\ns_add_u32 s89, s88, s37")
    A("s_add_u32 s36, s36, 4\ns_lshl_b32 s36, s36, 10\ns_add_u32 s36, s36, s88\ns_lshl_b32 s18, s18, 3\ns_add_u32 s36, s36, s18")
    TP = 188

    def pair_cvt(m, pr):
        c0, c1 = ((2 * pr) * NM + m) * 4, ((2 * pr + 1) * NM + m) * 4
        for r in range(4):
            A(f"v_accvgpr_read_b32 v{TP+r}, a{c0+r}")
        for r in range(4):
            A(f"v_accvgpr_read_b32 v{TP+4+r}, a{c1+r}")
        for r in range(4):
            A(f"v_mul_f32 v{TP+r}, v{TP+r}, v{c0+r}")
        for r in range(4):
            A(f"v_mul_f32 v{TP+4+r}, v{TP+4+r}, v{c1+r}")
        A(f"v_cvt_pk_bf16_f32 v{c0}, v{TP}, v{TP+1}\nv_cvt_pk_bf16_f32 v{c0+1}, v{TP+2}, v{TP+3}")
        A(f"v_cvt_pk_bf16_f32 v{c0+2}, v{TP+4}, v{TP+5}\nv_cvt_pk_bf16_f32 v{c0+3}, v{TP+6}, v{TP+7}")

    def pair_store(m, pr):
        c0 = ((2 * pr) * NM + m) * 4
        A(f"buffer_store_dwordx4 v[{c0}:{c0+3}], v{vLane16}, s[20:23], s89 offen offset:{pr*1024} sc1")
        if pr == 1:
            A(f"s_add_u32 s89, s89, {TS}")
    A("s_cmp_eq_u32 s16, 1\ns_cbranch_scc1 P1_epi1")
    for m in range(8):
        for pr in range(2):
            pair_cvt(m, pr)
            pair_store(m, pr)
        c = (4 * NM + m) * 4
        for r in range(4):
            A(f"v_accvgpr_read_b32 v{TP+r}, a{c+r}")
        for r in range(4):
            A(f"v_mul_f32 v{TP+r}, v{TP+r}, v{c+r}")
        A(f"v_cvt_pk_bf16_f32 v{c}, v{TP}, v{TP+1}\nv_cvt_pk_bf16_f32 v{c+1}, v{TP+2}, v{TP+3}")
        A(f"buffer_store_dwordx2 v[{c}:{c+1}], v{vLane16}, s[20:23], s36 offen sc1\ns_add_u32 s36, s36, {TS}")
    A("s_branch P1_done")
    A("P1_epi1:")
    for i in range(32):
        A(f"v_accvgpr_read_b32 v{IM+i}, a{128+i}")
    scan_pass1(A)
    for m in range(8):
        for pr in range(2):
            pair_cvt(m, pr)
    scan_poll(A)
    for m in range(8):
        for pr in range(2):
            pair_store(m, pr)
    A(f"s_lshl_b32 s34, s17, 13\ns_add_u32 s34, s34, {TRB}")
    scan_pass2(A, "s34")
    A("P1_done:")
    A.stamp(6)
    A(f"s_mov_b32 s19, {FP}\nbuffer_load_dwordx4 v[{T}:{T+3}], v{vLane16}, s[20:23], s19 offen sc1")
    A("s_and_b32 s12, s2, 7\ns_lshr_b32 s13, s2, 3")
    A("s_waitcnt vmcnt(0)\ns_barrier")
    A("s_cmp_lg_u32 s3, 0\ns_cbranch_scc1 P1_nof1")
    A(f"s_lshl_b32 s18, s51, 5\ns_add_u32 s18, s18, {F1}")
    A.flag("s18", T + 4)
    A("P1_nof1:")
    A.stamp(7)
    for k in range(4):
        A(f"v_xor_b32 v{T+k}, s96, v{T+k}")
    A(f"v_or3_b32 v{T}, v{T}, v{T+1}, v{T+2}\nv_or_b32 v{T}, v{T}, v{T+3}\nv_cmp_ne_u32 vcc, 0, v{T}\ns_cbranch_vccz P1_fpok")
    A.poll(vLane16, T, "s19", n=4)
    A("P1_fpok:")
    A("s_or_b32 s18, s2, s3\ns_cmp_lg_u32 s18, 0\ns_cbranch_scc1 P1_notag")
    A(f"s_mov_b32 s18, {NONCE}")
    A.flag("s18", T + 4)
    A("P1_notag:")
    A("s_mov_b32 s24, s20\ns_mov_b32 s25, s21\ns_mov_b32 s26, s22\ns_mov_b32 s27, 0x20000")
    A(f"s_lshl_b32 s90, s2, 7\ns_lshl_b32 s18, s3, 5\ns_add_u32 s90, s90, s18\ns_add_u32 s90, s90, {F2}")
    A("s_mov_b32 s46, 0")
    lane = 199
    A(f"v_lshrrev_b32 v{lane}, 4, v{vLane16}")
    A("s_cmp_ge_u32 s13, 30\ns_cbranch_scc1 P2_left\ns_cmp_ge_u32 s13, 24\ns_cbranch_scc1 P2_ssm")

    S2, R2 = 28672, 5
    A("s_mul_i32 s14, s13, 43\ns_lshr_b32 s14, s14, 8\ns_mul_i32 s15, s14, 6\ns_sub_u32 s15, s13, s15")
    A("s_lshr_b32 s18, s12, 1\ns_lshl_b32 s18, s18, 2\ns_add_u32 s14, s14, s18\ns_and_b32 s54, s12, 1")
    vH1, vRA, vRB, vRW = 160, 161, 162, 163
    adv2 = f"s_add_u32 s46, s46, {S2}\ns_cmp_eq_u32 s46, {R2*S2}\ns_cselect_b32 s46, 0, s46"
    A(f"s_mul_i32 s39, s15, {4608*192}\ns_mul_i32 s18, s54, {2304*192}\ns_add_u32 s39, s39, s18\ns_mul_i32 s44, s3, 3072\ns_add_u32 s39, s39, s44\ns_add_u32 s39, s39, {WP}")
    A("s_add_u32 s44, s44, 16384\ns_lshl_b32 s43, s3, 12")
    A(f"s_lshl_b32 s38, s14, 3\ns_lshl_b32 s18, s3, 1\ns_add_u32 s38, s38, s18\ns_mul_i32 s38, s38, {TS}\ns_mul_i32 s18, s54, {72*1024}\ns_add_u32 s38, s38, s18\ns_add_u32 s38, s38, {H2}")
    A(f"v_add_u32 v{vH1}, {TS - 2048}, v{vLane16}")

    def g_dmaH():
        G = []
        for x in range(4):
            g = []
            if x == 0:
                g.append("s_add_u32 m0, s46, s43")
            g.append(f"buffer_load_dwordx4 v{vLane16 if x < 2 else vH1}, s[24:27], s38 offen offset:{x*1024} sc1 lds")
            if x == 3:
                g.append("s_add_u32 s38, s38, 2048")
            G.append(g)
        return G

    def g_dmaW():
        G = []
        for x in range(3):
            g = []
            if x == 0:
                g.append("s_add_u32 m0, s46, s44")
            g.append(f"buffer_load_dwordx4 v{vLane16}, s[24:27], s39 offen offset:{x*1024} sc1 lds")
            if x == 2:
                g.append("s_add_u32 s39, s39, 12288")
            G.append(g)
        return G
    for st in range(R2):
        A.emit_dma(g_dmaW())
        A(adv2)
    vX, vXNr, vD, vO = 48, 60, 72, 78
    A("s_load_dwordx2 s[56:57], s[0:1], 64\ns_load_dwordx2 s[58:59], s[0:1], 104")
    t = 176
    A(f"v_and_b32 v{t}, 15, v{lane}\nv_lshrrev_b32 v{t+1}, 4, v{lane}\nv_lshrrev_b32 v{t+2}, 2, v{t}\nv_lshlrev_b32 v{t+2}, 5, v{t+2}\nv_and_b32 v{t+3}, 3, v{t}\nv_add_u32 v{t+2}, v{t+2}, v{t+3}")
    A("s_lshl_b32 s34, s17, 1\ns_add_u32 s34, s34, s54\ns_lshl_b32 s34, s34, 1")
    A("s_lshl_b32 s18, s14, 7\ns_lshl_b32 s19, s34, 2\ns_add_u32 s18, s18, s19")
    A("s_mul_i32 s35, s15, 96\ns_mul_i32 s19, s16, 48\ns_add_u32 s35, s35, s19")
    A(f"v_add_u32 v{t+2}, s18, v{t+2}\nv_mul_u32_u24 v{t+2}, 576, v{t+2}\nv_lshl_add_u32 v{t+3}, v{t+1}, 2, s35\nv_add_u32 v{t+2}, v{t+2}, v{t+3}")
    A(f"v_lshlrev_b32 v{vO}, 2, v{t+2}\nv_add_u32 v{vO+1}, {4*576*4}, v{vO}\nv_lshlrev_b32 v{t+2}, 1, v{t+2}\nv_lshlrev_b32 v{t+3}, 1, v{t+3}")
    A.srd(28, 52, 2359296)
    A(f"s_mov_b32 s18, {4*1152}")
    for k in range(2):
        for dr in range(3):
            r = vX + (k * 3 + dr) * 2
            A(f"buffer_load_dwordx2 v[{r}:{r+1}], v{t+2}, s[28:31], {'0' if k == 0 else 's18'} offen offset:{32*dr}")
    A("s_waitcnt lgkmcnt(0)")
    A.srd(76, 56, 1152)
    A.srd(80, 58, 4718592)
    for dr in range(3):
        A(f"buffer_load_dwordx2 v[{vD+2*dr}:{vD+2*dr+1}], v{t+3}, s[76:79], 0 offen offset:{32*dr}")
    A(f"v_lshrrev_b32 v{t+4}, 2, v{t}\nv_sub_u32 v{t+4}, 4, v{t+4}\nv_lshrrev_b32 v{t+5}, 1, v{t+1}\nv_xor_b32 v{t+4}, v{t+4}, v{t+5}\nv_and_b32 v{t+4}, 3, v{t+4}")
    A(f"v_lshl_add_u32 v{t+4}, v{t}, 2, v{t+4}\nv_lshlrev_b32 v{t+4}, 4, v{t+4}\nv_and_b32 v{t+5}, 1, v{t+1}\nv_lshl_add_u32 v{t+4}, v{t+5}, 3, v{t+4}")
    A("s_lshr_b32 s18, s14, 1\ns_mul_i32 s18, s18, 18\ns_and_b32 s19, s14, 1\ns_lshl_b32 s19, s19, 3\ns_add_u32 s19, s19, s34\ns_lshl_b32 s19, s19, 10")
    A("s_lshr_b32 s36, s35, 4")
    for dr in range(3):
        A(f"s_add_u32 s37, s36, {dr}\ns_and_b32 s40, s37, 1\ns_lshl_b32 s40, s40, 5\ns_lshr_b32 s37, s37, 1\ns_add_u32 s37, s37, s18\ns_lshl_b32 s37, s37, 14\ns_add_u32 s37, s37, s19")
        A(f"v_xor_b32 v{t+6+dr}, s40, v{t+4}\nv_add_u32 v{t+6+dr}, s37, v{t+6+dr}")
    A(f"s_lshl_b32 s18, s34, 11\nv_add_u32 v{vRA}, s18, v{vLane16}\ns_xor_b32 s18, s18, 4096\nv_add_u32 v{vRB}, s18, v{vLane16}")
    A(f"v_lshrrev_b32 v{t+4}, 2, v{lane}\nv_mul_u32_u24 v{t+4}, 192, v{t+4}\nv_and_b32 v{t+5}, 3, v{lane}\nv_lshl_add_u32 v{t+4}, v{t+5}, 3, v{t+4}\nv_add_u32 v{t+4}, 16384, v{t+4}")
    A(f"v_bfe_u32 v{t+5}, v{lane}, 4, 1\ns_mul_i32 s18, s16, 3")
    for dr in range(3):
        A(f"s_add_u32 s19, s18, {dr}\nv_xor_b32 v{t+9}, s19, v{t+5}\nv_lshl_add_u32 v{vRW+dr}, v{t+9}, 5, v{t+4}")
    for i in range(48):
        A(f"v_mov_b32 v{i}, 0")
    A(f"v_lshlrev_b32 v{t+9}, 7, v{t}\ns_lshr_b32 s18, s14, 1\ns_lshl_b32 s18, s18, 12\ns_lshl_b32 s19, s54, 11\ns_add_u32 s18, s18, s19\ns_add_u32 s18, s18, {F1}")
    A.poll(t + 9, t + 10, "s18")
    A.stamp(8)
    A(f"v_mov_b32 v{t+9}, {OOB}")
    for st in range(R2):
        A.emit_dma(g_dmaH())
        A(adv2)
        if st in (1, 2):
            for dr in range(3):
                r = vXNr + ((st - 1) * 3 + dr) * 2
                A(f"buffer_load_dwordx2 v[{r}:{r+1}], v{t+6+dr}, s[20:23], 0 offen offset:{(st-1)*1024} sc1")
        if st == 3:
            for _ in range(3):
                A(f"buffer_load_dword v222, v{t+9}, s[20:23], 0 offen")
    A("s_waitcnt vmcnt(25)\ns_barrier")
    A.stamp(9)

    def g_reads(par):
        b = par * 56
        L = []
        for ks in range(2):
            for tt in range(4):
                r = b + (ks * 4 + tt) * 4
                L.append(f"ds_read_b128 a[{r}:{r+3}], v{vRA if tt < 2 else vRB} offset:{(tt&1)*2048 + ks*1024}")
            for dr in range(3):
                r = b + 32 + (ks * 3 + dr) * 4
                for h2 in range(2):
                    L.append(f"ds_read_b64_tr_b16 a[{r+2*h2}:{r+2*h2+1}], v{vRW+dr} offset:{ks*6144 + h2*3072}")
        return L

    def g_mf(par):
        b = par * 56
        M = []
        for ks in range(2):
            for dr in range(3):
                for tt in range(4):
                    c = (tt * 3 + dr) * 4
                    w, hh = b + 32 + (ks * 3 + dr) * 4, b + (ks * 4 + tt) * 4
                    M.append(f"v_mfma_f32_16x16x32_bf16 v[{c}:{c+3}], a[{w}:{w+3}], a[{hh}:{hh+3}], v[{c}:{c+3}]")
        return M
    G2 = g_dmaH() + g_dmaW()
    G2[-1].append(adv2)
    ring_loop(A, "P2g_loop", 36, g_mf, g_reads, G2, [vRA, vRB, vRW, vRW + 1, vRW + 2], S2, R2, 21, 2, cut=[26])
    A.stamp(10)
    A(f"s_lshl_b32 s18, s2, 2\ns_add_u32 s18, s18, s3\ns_mul_i32 s36, s18, 6144\ns_add_u32 s36, s36, {EX}\ns_add_u32 s37, s36, 3072")
    A(f"s_xor_b32 s18, s18, 4\ns_mul_i32 s40, s18, 6144\ns_add_u32 s40, s40, {EX}\ns_add_u32 s41, s40, 3072")
    for k in range(6):
        A(f"buffer_store_dwordx4 v[{24+4*k}:{27+4*k}], v{vLane16}, s[20:23], s{36 + k//3} offen offset:{(k%3)*1024} sc1")
    A("s_and_b32 s18, s14, 1\ns_mul_i32 s18, s18, 3\ns_lshr_b32 s19, s15, 1\ns_add_u32 s18, s18, s19\ns_add_u32 s18, s18, 24\ns_lshl_b32 s18, s18, 3\ns_lshr_b32 s19, s14, 1\ns_add_u32 s18, s18, s19")
    A(f"s_lshl_b32 s18, s18, 2\ns_lshl_b32 s19, s17, 1\ns_add_u32 s18, s18, s19\ns_and_b32 s19, s15, 1\ns_add_u32 s18, s18, s19\ns_lshl_b32 s18, s18, 5\ns_add_u32 s18, s18, {F2}")
    A(f"s_xor_b32 s19, s90, 128\nv_mov_b32 v{t}, s19\nv_mov_b32 v{t+1}, s18\nv_and_b32 v{t+2}, 1, v{lane}\nv_cmp_eq_u32 vcc, 1, v{t+2}\ns_nop 1\nv_cndmask_b32 v{t}, v{t}, v{t+1}, vcc")
    A(f"s_lshl_b32 s18, s14, 3\ns_add_u32 s18, s18, s34\ns_mul_i32 s18, s18, 36\ns_lshr_b32 s19, s35, 4\ns_add_u32 s18, s18, s19\ns_lshl_b32 s18, s18, 10\ns_add_u32 s42, s18, {YY}\ns_add_u32 s43, s42, 36864")
    A("s_waitcnt vmcnt(0) lgkmcnt(0)")
    A.flag("s90", t + 4)
    A.stamp(11)
    for k in range(6):
        dr = k % 3
        c = 80 + 4 * k
        A(f"v_lshlrev_b32 v{c}, 16, v{vXNr+2*k}\nv_and_b32 v{c+1}, 0xffff0000, v{vXNr+2*k}\nv_lshlrev_b32 v{c+2}, 16, v{vXNr+2*k+1}\nv_and_b32 v{c+3}, 0xffff0000, v{vXNr+2*k+1}")
        A(f"v_lshlrev_b32 v{t+4}, 16, v{vD+2*dr}\nv_and_b32 v{t+5}, 0xffff0000, v{vD+2*dr}\nv_lshlrev_b32 v{t+6}, 16, v{vD+2*dr+1}\nv_and_b32 v{t+7}, 0xffff0000, v{vD+2*dr+1}")
        for r in range(4):
            A(f"v_mul_f32 v{c+r}, v{c+r}, v{t+4+r}")
        A(f"v_cvt_pk_bf16_f32 v{t+4}, v{c}, v{c+1}\nv_cvt_pk_bf16_f32 v{t+5}, v{c+2}, v{c+3}")
        A(f"v_lshlrev_b32 v{c}, 16, v{t+4}\nv_and_b32 v{c+1}, 0xffff0000, v{t+4}\nv_lshlrev_b32 v{c+2}, 16, v{t+5}\nv_and_b32 v{c+3}, 0xffff0000, v{t+5}")
        x = 104 + 4 * k
        A(f"v_lshlrev_b32 v{x}, 16, v{vX+2*k}\nv_and_b32 v{x+1}, 0xffff0000, v{vX+2*k}\nv_lshlrev_b32 v{x+2}, 16, v{vX+2*k+1}\nv_and_b32 v{x+3}, 0xffff0000, v{vX+2*k+1}")
    A.poll(t, t + 1)
    A.stamp(12)
    for k in range(6):
        A(f"buffer_load_dwordx4 v[{24+4*k}:{27+4*k}], v{vLane16}, s[20:23], s{40 + k//3} offen offset:{(k%3)*1024} sc1")
        A(f"buffer_load_dwordx4 v[{128+4*k}:{131+4*k}], v{vLane16}, s[20:23], s{42 + k//3} offen offset:{(k%3)*1024} sc1")
    NL2E = f2u(-LOG2E)
    for k in range(6):
        g, p, y, c, x, a, b = 4 * k, 24 + 4 * k, 128 + 4 * k, 80 + 4 * k, 104 + 4 * k, t + 4, t + 8
        A(f"s_waitcnt vmcnt({10 - k})")
        for r in range(4):
            A(f"v_add_f32 v{g+r}, v{g+r}, v{p+r}")
        A(f"v_cvt_pk_bf16_f32 v{a}, v{g}, v{g+1}\nv_cvt_pk_bf16_f32 v{a+1}, v{g+2}, v{g+3}")
        A(f"v_lshlrev_b32 v{g}, 16, v{a}\nv_and_b32 v{g+1}, 0xffff0000, v{a}\nv_lshlrev_b32 v{g+2}, 16, v{a+1}\nv_and_b32 v{g+3}, 0xffff0000, v{a+1}")
        for r in range(4):
            A(f"v_mul_f32 v{b+r}, {NL2E}, v{g+r}")
        for r in range(4):
            A(f"v_exp_f32 v{b+r}, v{b+r}")
        for r in range(4):
            A(f"v_add_f32 v{y+r}, v{y+r}, v{c+r}")
        for r in range(4):
            A(f"v_add_f32 v{b+r}, 1.0, v{b+r}")
        for r in range(4):
            A(f"v_rcp_f32 v{b+r}, v{b+r}")
        A("s_nop 0")
        for r in range(4):
            A(f"v_mul_f32 v{g+r}, v{g+r}, v{b+r}")
        A(f"v_cvt_pk_bf16_f32 v{a}, v{g}, v{g+1}\nv_cvt_pk_bf16_f32 v{a+1}, v{g+2}, v{g+3}")
        A(f"v_lshlrev_b32 v{g}, 16, v{a}\nv_and_b32 v{g+1}, 0xffff0000, v{a}\nv_lshlrev_b32 v{g+2}, 16, v{a+1}\nv_and_b32 v{g+3}, 0xffff0000, v{a+1}")
        for r in range(4):
            A(f"v_fma_f32 v{y+r}, v{y+r}, v{g+r}, v{x+r}")
        A(f"buffer_store_dwordx4 v[{y}:{y+3}], v{vO + k//3}, s[80:83], 0 offen offset:{64*(k%3)}")
    if opts.get("stamp"):
        A("s_waitcnt vmcnt(0)")
    A.stamp(13)
    A("s_endpgm")

    A("P2_ssm:")
    S3, R3 = 20480, 6
    A("s_sub_u32 s18, s13, 24\ns_cmp_ge_u32 s18, 3\ns_cselect_b32 s19, 1, 0\ns_mul_i32 s15, s19, 3\ns_sub_u32 s15, s18, s15\ns_lshl_b32 s14, s12, 1\ns_add_u32 s14, s14, s19")
    adv3 = f"s_add_u32 s46, s46, {S3}\ns_cmp_eq_u32 s46, {R3*S3}\ns_cselect_b32 s46, 0, s46"
    A(f"s_mul_i32 s39, s15, 12288\ns_mul_i32 s44, s3, 3072\ns_add_u32 s39, s39, s44\ns_add_u32 s39, s39, {CP}\ns_add_u32 s44, s44, 8192\ns_lshl_b32 s43, s3, 11")
    A(f"s_lshl_b32 s38, s14, 3\ns_lshl_b32 s18, s3, 1\ns_add_u32 s38, s38, s18\ns_mul_i32 s38, s38, {TS}\ns_add_u32 s38, s38, {H2 + 144*1024}")
    A(f"v_add_u32 v{vH1}, {TS - 1024}, v{vLane16}")

    def s_dmaH():
        return [["s_add_u32 m0, s46, s43", f"buffer_load_dwordx4 v{vLane16}, s[24:27], s38 offen sc1 lds"],
                [f"buffer_load_dwordx4 v{vH1}, s[24:27], s38 offen offset:1024 sc1 lds", "s_add_u32 s38, s38, 1024"]]

    def s_dmaC():
        G = []
        for x in range(3):
            g = []
            if x == 0:
                g.append("s_add_u32 m0, s46, s44")
            g.append(f"buffer_load_dwordx4 v{vLane16}, s[24:27], s39 offen offset:{x*1024} sc1 lds")
            if x == 2:
                g.append("s_add_u32 s39, s39, 36864")
            G.append(g)
        return G
    for st in range(R3):
        A.emit_dma(s_dmaC())
        A(adv3)
    A(f"s_lshl_b32 s18, s17, 12\nv_add_u32 v{vRA}, s18, v{vLane16}\ns_mul_i32 s18, s16, 6144\ns_add_u32 s18, s18, 8192\nv_add_u32 v{vRB}, s18, v{vLane16}")
    for i in range(96):
        A(f"v_mov_b32 v{i}, 0")
    A(f"v_and_b32 v{t}, 31, v{lane}\nv_lshlrev_b32 v{t}, 7, v{t}\ns_lshr_b32 s18, s14, 1\ns_lshl_b32 s18, s18, 12\ns_add_u32 s18, s18, {F1}")
    A(f"v_and_b32 v{t+2}, 3, v{lane}\nv_lshlrev_b32 v{t+2}, 5, v{t+2}\ns_and_b32 s19, s14, 1\ns_add_u32 s19, s19, 30\ns_lshl_b32 s19, s19, 3\ns_lshr_b32 s34, s14, 1\ns_add_u32 s34, s34, s19\ns_lshl_b32 s34, s34, 7\ns_add_u32 s34, s34, {F2}")
    A.poll(t, t + 1, "s18")
    A.stamp(16)
    A(f"v_mov_b32 v{t}, {OOB}")
    for st in range(R3):
        A.emit_dma(s_dmaH())
        A(adv3)
        if 1 <= st <= R3 - 2:
            for _ in range(3):
                A(f"buffer_load_dword v222, v{t}, s[20:23], 0 offen")
    A(f"s_waitcnt vmcnt({2 + 5*(R3-2)})\ns_barrier")
    A.stamp(17)

    def s_reads(par):
        b = par * 40
        return [f"ds_read_b128 a[{b+4*tt}:{b+4*tt+3}], v{vRA} offset:{tt*1024}" for tt in range(4)] + \
               [f"ds_read_b128 a[{b+16+4*dr}:{b+19+4*dr}], v{vRB} offset:{dr*1024}" for dr in range(6)]

    def s_mf(par):
        b = par * 40
        M = []
        for dr in range(6):
            for tt in range(4):
                c = (tt * 6 + dr) * 4
                M.append(f"v_mfma_f32_16x16x32_bf16 v[{c}:{c+3}], a[{b+16+4*dr}:{b+19+4*dr}], a[{b+4*tt}:{b+4*tt+3}], v[{c}:{c+3}]")
        return M
    G3 = s_dmaH() + s_dmaC()
    G3[-1].append(adv3)
    ring_loop(A, "P2s_loop", 36, s_mf, s_reads, G3, [vRA, vRB], S3, R3, 5 * (R3 - 2), 2, hooks=[(32 - R3, "P2s_hook")], cut=[26])
    A.stamp(19)
    A(f"s_lshl_b32 s18, s14, 1\ns_add_u32 s18, s18, s17\ns_mul_i32 s18, s18, 144\ns_lshl_b32 s19, s15, 1\ns_add_u32 s19, s19, s16\ns_mul_i32 s19, s19, 6\ns_add_u32 s18, s18, s19\ns_lshl_b32 s18, s18, 10\ns_add_u32 s18, s18, {YY}")
    for tt in range(4):
        A("s_add_u32 s19, s18, 3072")
        for dr in range(6):
            c = (tt * 6 + dr) * 4
            A(f"buffer_store_dwordx4 v[{c}:{c+3}], v{vLane16}, s[20:23], s{18 + dr//3} offen offset:{(dr%3)*1024} sc1")
        A("s_add_u32 s18, s18, 36864")
    A("s_waitcnt vmcnt(0) lgkmcnt(0)")
    A.flag("s90", t + 4)
    A.stamp(20)
    A("s_endpgm")
    A("P2s_hook:")
    A.poll(t + 2, t + 3, "s34")
    A.stamp(18)
    A("s_branch P2s_hook_ret")

    A("P2_left:")
    S4, R4 = 16384, 8
    A("s_sub_u32 s18, s13, 30\ns_lshl_b32 s55, s12, 1\ns_add_u32 s55, s55, s18\ns_add_u32 s62, s3, 32")
    A(f"v_lshlrev_b32 v{t}, 5, v{lane}\ns_lshl_b32 s19, s55, 11\ns_add_u32 s19, s19, {F0}")
    A(f"s_mul_i32 s38, s12, 294912\ns_lshl_b32 s18, s18, 13\ns_add_u32 s38, s38, s18\ns_lshl_b32 s43, s3, 11\ns_add_u32 s38, s38, s43\ns_add_u32 s44, s43, 8192")
    A.srd(28, 8, 663552)
    A.srd(32, 10, 663552)
    A("s_mul_i32 s39, s62, 18432")
    vB0, vB1 = 160 + 4, 160 + 5
    bsrc(vB0, lane, t + 4)
    A(f"v_subrev_u32 v{vB1}, 1024, v{vB0}\ns_add_u32 s40, s39, 0")
    A.srd(76, 56, 1152)
    A.srd(80, 58, 1152)
    A.srd(84, 60, 1152)
    A(f"v_and_b32 v{t+4}, 15, v{lane}\ns_lshl_b32 s18, s62, 4\nv_add_lshl_u32 v{t+4}, v{t+4}, s18, 1")
    A(f"buffer_load_ushort v{cL}, v{t+4}, s[76:79], 0 offen\nbuffer_load_ushort v{cL+1}, v{t+4}, s[80:83], 0 offen\nbuffer_load_ushort v{cL+2}, v{t+4}, s[84:87], 0 offen")
    A.poll(t, t + 1, "s19")
    adv4 = f"s_add_u32 s46, s46, {S4}\ns_cmp_eq_u32 s46, {R4*S4}\ns_cselect_b32 s46, 0, s46"

    def l_dma():
        return [["s_add_u32 m0, s46, s43", f"buffer_load_dwordx4 v{vLane16}, s[24:27], s38 offen sc1 lds"],
                [f"buffer_load_dwordx4 v{vLane16}, s[24:27], s38 offen offset:1024 sc1 lds", "s_add_u32 s38, s38, 16384"],
                ["s_add_u32 m0, s46, s44", f"buffer_load_dwordx4 v{vB0}, s[28:31], s39 offen lds"],
                ["s_add_u32 m0, s46, s45", f"buffer_load_dwordx4 v{vB0}, s[32:35], s39 offen lds", "s_add_u32 s39, s39, 64", adv4]]
    A("s_add_u32 s45, s44, 1024")
    for st in range(R4):
        A.emit_dma(l_dma())
    ssm_consts(A, cL, cL + 1, cL + 2, t + 4)
    for i in range(32):
        A(f"v_mov_b32 v{RE+i}, 0\nv_mov_b32 v{IM+i}, 0")
    A(f"v_mov_b32 v{vRA}, v{vSw}\nv_add_u32 v{vRB}, s44, v{vSw}")
    A(f"s_waitcnt vmcnt({4*(R4-1)})\ns_barrier")
    A.stamp(24)

    def l_reads(par):
        b = par * 40
        return [f"ds_read_b128 a[{b+32+4*k}:{b+35+4*k}], v{vRB} offset:{k*1024}" for k in range(2)] + \
               [f"ds_read_b128 a[{b+4*m}:{b+4*m+3}], v{vRA} offset:{m*1024}" for m in range(8)]

    def l_mf(par):
        b = par * 40
        M = []
        for k in range(2):
            for m in range(8):
                c = (RE if k == 0 else IM) + 4 * m
                M.append(f"v_mfma_f32_16x16x32_bf16 v[{c}:{c+3}], a[{b+4*m}:{b+4*m+3}], a[{b+32+4*k}:{b+35+4*k}], v[{c}:{c+3}]")
        return M
    ring_loop(A, "P2l_loop", 18, l_mf, l_reads, l_dma(), [vRA, vRB], S4, R4, 4 * (R4 - 2), 2, cut=[26, 30, 34])
    A(f"s_mul_i32 s88, s55, {8*TS}\ns_add_u32 s88, s88, {H2}\ns_lshl_b32 s34, s3, 13\ns_add_u32 s34, s34, {R4*S4}\ns_nop 4")
    A.stamp(25)
    scan_pass1(A)
    scan_poll(A)
    scan_pass2(A, "s34")
    A("s_waitcnt vmcnt(0)")
    A.flag("s90", t + 4)
    A.stamp(26)
    A("L_end:\ns_endpgm")

    head = ("; S5 scan + bilinear GLU block, one persistent kernel: layernorm -> up projections + scan -> down projections + gate\n"
            "; @launch grid=(256,1,1) block=(256,1,1) lds=163840\n"
            '.amdgcn_target "amdgcn-amd-amdhsa--gfx950"\n')
    tail = ('.section .rodata,"a"\n.p2align 6\n'
            f".amdhsa_kernel {K}\n.amdhsa_next_free_vgpr 512\n.amdhsa_next_free_sgpr 102\n.amdhsa_accum_offset 256\n"
            ".amdhsa_group_segment_fixed_size 0\n.amdhsa_kernarg_size 128\n.amdhsa_user_sgpr_count 2\n"
            ".amdhsa_user_sgpr_kernarg_segment_ptr 1\n.amdhsa_system_sgpr_workgroup_id_x 1\n.end_amdhsa_kernel\n")
    return head + "\n".join(A.L) + "\n" + tail


if __name__ == "__main__":
    opts = {}
    path = f"cdna_kernels/{NAME}.s"
    for a in sys.argv[1:]:
        if a.startswith("out="):
            path = a[4:]
        else:
            k, _, v = a.partition("=")
            opts[k] = int(v) if v else 1
    open(path, "w").write(gen(opts))
    print("wrote", path)
```

```python
import sys, struct

NAME = "recurrent_scan__ssm_conv_s5__glu_gated_bilinear__prompt"
XN = 0x0
CP = 0x280000
HO = 0x400000
F0 = 0x440000
F1 = 0x448000
FP = 0x450000
F2 = 0x458000
NONCE = 0x460000
WP = 0x480000
H2 = 0xA00000
EX = 0x2100000
YY = 0x2700000
WS_SZ = 0x2B80000
TS_OFF = 0x3000000
TS = 180 * 1024
OOB = 0x40000000
SPIN = 0x8000
R, STAGE = 4, 36864
TRB = 147456
LOG2E = 1.4426950408889634


def f2u(x):
    return struct.unpack("<I", struct.pack("<f", x))[0]


class Asm:
    def __init__(self, opts):
        self.L = []
        self.opts = opts
        self.nlab = 0

    def __call__(self, s):
        for ln in s.split("\n"):
            ln = ln.strip()
            if ln:
                self.L.append(ln)

    def srd(self, d, base, size):
        self(f"s_mov_b32 s{d}, s{base}\ns_mov_b32 s{d+1}, s{base+1}\ns_mov_b32 s{d+2}, {size}\ns_mov_b32 s{d+3}, 0x20000")

    def label(self, p):
        self.nlab += 1
        return f"{p}_{self.nlab}"

    def emit_dma(self, groups):
        for g in groups:
            for ln in g:
                self(ln)
                if " m0," in ln:
                    self("s_nop 0")

    def stamp(self, slot, vt=220):
        if not self.opts.get("stamp"):
            return
        kidx, sl = slot >> 3, slot & 7
        self(f"s_memrealtime s[98:99]\ns_waitcnt lgkmcnt(0)")
        self(f"s_lshl_b32 s100, s2, 8\ns_add_u32 s100, s100, {TS_OFF + kidx * 0x20000 + sl * 4}")
        self(f"s_lshl_b32 s101, s3, 5\ns_add_u32 s100, s100, s101")
        self(f"v_mov_b32 v{vt}, s100\nv_mov_b32 v{vt+1}, s98")
        self(f"global_store_dword v{vt}, v{vt+1}, s[4:5]")

    def cstamp(self, slot, vt=220):
        if not self.opts.get("stamp"):
            return
        self(f"s_memtime s[98:99]\ns_waitcnt lgkmcnt(0)")
        self(f"s_lshl_b32 s100, s2, 8\ns_add_u32 s100, s100, {TS_OFF + 7 * 0x20000 + slot * 4}")
        self(f"s_lshl_b32 s101, s3, 5\ns_add_u32 s100, s100, s101")
        self(f"v_mov_b32 v{vt}, s100\nv_mov_b32 v{vt+1}, s98")
        self(f"global_store_dword v{vt}, v{vt+1}, s[4:5]")

    def poll(self, vaddr, vdata, soff="0", n=1):
        lab = self.label("poll")
        op = {1: "buffer_load_dword", 4: "buffer_load_dwordx4"}[n]
        dst = f"v{vdata}" if n == 1 else f"v[{vdata}:{vdata+3}]"
        self(f"s_mov_b32 s97, 0\n{lab}:")
        self(f"{op} {dst}, v{vaddr}, s[20:23], {soff} offen sc1\ns_waitcnt vmcnt(0)")
        if n == 4:
            for k in range(4):
                self(f"v_xor_b32 v{vdata+k}, s96, v{vdata+k}")
            self(f"v_or3_b32 v{vdata}, v{vdata}, v{vdata+1}, v{vdata+2}\nv_or_b32 v{vdata}, v{vdata}, v{vdata+3}\nv_cmp_ne_u32 vcc, 0, v{vdata}")
        else:
            self(f"v_cmp_ne_u32 vcc, s96, v{vdata}")
        self(f"s_add_u32 s97, s97, 1\ns_cmp_ge_u32 s97, {SPIN}\ns_cbranch_scc1 {lab}_x\ns_cbranch_vccnz {lab}\n{lab}_x:")

    def flag(self, soff, vt):
        self(f"v_mov_b32 v{vt}, 0\nv_mov_b32 v{vt+1}, s96\ns_mov_b64 exec, 1")
        self(f"buffer_store_dword v{vt+1}, v{vt}, s[20:23], {soff} offen sc1\ns_mov_b64 exec, -1")


vLane16, vXrd, vWrd, vRd5 = 200, 201, 202, 203
vOff = 204
vLr, vLi, vKr, vKi = 209, 210, 211, 212
vP32, vP128, vP512 = 213, 215, 217
vSw = 219
RE, IM = 128, 224
T = 160


def ssm_consts(A, lre, lim, ldt, t0):
    t1, t2, t3 = t0 + 1, t0 + 2, t0 + 3
    L2E = f2u(LOG2E)
    A(f"v_lshlrev_b32 v{lre}, 16, v{lre}\nv_lshlrev_b32 v{lim}, 16, v{lim}\nv_lshlrev_b32 v{ldt}, 16, v{ldt}")
    A(f"v_mul_f32 v{ldt}, {L2E}, v{ldt}\nv_exp_f32 v{ldt}, v{ldt}\ns_nop 0\nv_cvt_pk_bf16_f32 v{ldt}, v{ldt}, v{ldt}\nv_lshlrev_b32 v{ldt}, 16, v{ldt}")
    A(f"v_mul_f32 v{t0}, v{ldt}, v{lre}\nv_mul_f32 v{t1}, v{ldt}, v{lim}")
    A(f"v_mul_f32 v{t0}, {L2E}, v{t0}\nv_exp_f32 v{t0}, v{t0}")
    A(f"v_mul_f32 v{t1}, 0.15915494, v{t1}\nv_rndne_f32 v{t2}, v{t1}\nv_sub_f32 v{t1}, v{t1}, v{t2}")
    A(f"v_cos_f32 v{t2}, v{t1}\nv_sin_f32 v{t3}, v{t1}\ns_nop 0\nv_mul_f32 v{vLr}, v{t0}, v{t2}\nv_mul_f32 v{vLi}, v{t0}, v{t3}")
    A(f"v_mul_f32 v{t0}, v{lre}, v{lre}\nv_fmac_f32 v{t0}, v{lim}, v{lim}\nv_rcp_f32 v{t0}, v{t0}\nv_add_f32 v{t1}, -1.0, v{vLr}")
    A(f"v_add_f32 v{t0}, v{t0}, v{t0}")
    A(f"v_mul_f32 v{t2}, v{t1}, v{lre}\nv_fmac_f32 v{t2}, v{vLi}, v{lim}\nv_mul_f32 v{vKr}, v{t2}, v{t0}")
    A(f"v_mul_f32 v{t2}, v{vLi}, v{lre}\nv_fma_f32 v{t2}, -v{t1}, v{lim}, v{t2}\nv_mul_f32 v{vKi}, v{t2}, v{t0}")
    A(f"v_mov_b32 v{t0}, v{vLr}\nv_sub_f32 v{t1}, 0, v{vLi}")
    for s in range(9):
        A(f"v_mul_f32 v{t2}, v{t1}, v{t1}\nv_mul_f32 v{t3}, v{t0}, v{t1}\nv_fma_f32 v{t0}, v{t0}, v{t0}, -v{t2}\nv_add_f32 v{t1}, v{t3}, v{t3}")
        dst = {4: vP32, 6: vP128, 8: vP512}.get(s)
        if dst:
            A(f"v_mov_b32 v{dst}, v{t0}\nv_mov_b32 v{dst+1}, v{t1}")


def gather4(A, b0, b1):
    for bb in (b0, b1):
        A(f"v_mov_b32 v{bb+2}, v{bb}")
    A("s_nop 1")
    for bb in (b0, b1):
        A(f"v_permlane32_swap_b32 v{bb}, v{bb+2}")
    for bb in (b0, b1):
        A(f"v_mov_b32 v{bb+1}, v{bb}\nv_mov_b32 v{bb+3}, v{bb+2}")
    A("s_nop 1")
    for bb in (b0, b1):
        A(f"v_permlane16_swap_b32 v{bb}, v{bb+1}\nv_permlane16_swap_b32 v{bb+2}, v{bb+3}")
    A("s_nop 1")


def horner(A, dr, di, P, xs, tmp):
    cur = xs[0]
    for n, x in enumerate(xs[1:]):
        o = (dr, di) if n == len(xs) - 2 else (tmp + 2 * (n & 1), tmp + 2 * (n & 1) + 1)
        A(f"v_fma_f32 v{o[0]}, v{P}, v{cur[0]}, v{x[0]}\nv_fma_f32 v{o[1]}, v{P}, v{cur[1]}, v{x[1]}")
        A(f"v_fma_f32 v{o[0]}, -v{P+1}, v{cur[1]}, v{o[0]}\nv_fma_f32 v{o[1]}, v{P+1}, v{cur[0]}, v{o[1]}")
        cur = o


Er, Ei, PUB, vA = T + 4, T + 8, T + 12, T + 16


def scan_pass1(A):
    a, b = (T, T + 1), (T + 2, T + 3)
    A(f"v_mov_b32 v{T}, v{RE}\nv_mov_b32 v{T+1}, v{IM}")
    for t in range(1, 32):
        A(f"v_fma_f32 v{b[0]}, v{vLr}, v{a[0]}, v{RE+t}\nv_fma_f32 v{b[1]}, v{vLr}, v{a[1]}, v{IM+t}")
        A(f"v_fma_f32 v{b[0]}, -v{vLi}, v{a[1]}, v{b[0]}\nv_fma_f32 v{b[1]}, v{vLi}, v{a[0]}, v{b[1]}")
        a, b = b, a
    A(f"v_mul_f32 v{Er}, v{vKr}, v{a[0]}\nv_mul_f32 v{Ei}, v{vKr}, v{a[1]}")
    A(f"v_fma_f32 v{Er}, -v{vKi}, v{a[1]}, v{Er}\nv_fma_f32 v{Ei}, -v{vKi}, v{a[0]}, -v{Ei}")
    gather4(A, Er, Ei)
    horner(A, PUB, PUB + 2, vP32, [(Er + n, Ei + n) for n in range(4)], T)
    A(f"v_mov_b32 v{PUB+1}, s96\nv_mov_b32 v{PUB+3}, s96")
    A(f"s_lshl_b32 s37, s62, 12\ns_add_u32 s37, s37, {HO}\ns_lshl_b32 s36, s55, 8\ns_add_u32 s36, s36, s37")
    A(f"v_and_b32 v{vA}, 0xf0, v{vLane16}\nv_lshrrev_b32 v{vA+1}, 8, v{vLane16}\nv_lshl_add_u32 v{vA+2}, v{vA+1}, 28, v{vA}")
    A(f"buffer_store_dwordx4 v[{PUB}:{PUB+3}], v{vA+2}, s[20:23], s36 offen sc1")
    A(f"s_sub_u32 s18, s55, 16\nv_lshl_add_u32 v{vA+1}, v{vA+1}, 2, s18\nv_mov_b32 v{vA+3}, s96")
    for n in range(4):
        A(f"v_add_u32 v{vA+2}, {n}, v{vA+1}\nv_cmp_le_i32 vcc, 0, v{vA+2}\nv_lshl_add_u32 v{vA+2}, v{vA+2}, 8, v{vA}")
        A(f"v_mov_b32 v{vA+4+n}, {OOB}\nv_cndmask_b32 v{vA+8+n}, 0, v{vA+3}, vcc\nv_cndmask_b32 v{vA+4+n}, v{vA+4+n}, v{vA+2}, vcc")
    for t in range(32):
        x = T + 2 * (t & 1)
        A(f"v_mul_f32 v{x}, v{vKr}, v{RE+t}\nv_mul_f32 v{x+1}, v{vKi}, v{RE+t}")
        A(f"v_fma_f32 v{RE+t}, -v{vKi}, v{IM+t}, v{x}\nv_fma_f32 v{IM+t}, -v{vKr}, v{IM+t}, -v{x+1}")


def scan_poll(A):
    G0 = 32
    lab = A.label("spoll")
    A(f"s_mov_b32 s97, 0\n{lab}:")
    for n in range(4):
        A(f"buffer_load_dwordx4 v[{G0+4*n}:{G0+4*n+3}], v{vA+4+n}, s[20:23], s37 offen sc1")
    A("s_waitcnt vmcnt(0)")
    A(f"v_xor_b32 v{T}, v{G0+1}, v{vA+8}\nv_xor_b32 v{T+1}, v{G0+3}, v{vA+8}\nv_or_b32 v{T}, v{T}, v{T+1}")
    for n in range(1, 4):
        A(f"v_xor_b32 v{T+1}, v{G0+4*n+1}, v{vA+8+n}\nv_xor_b32 v{T+2}, v{G0+4*n+3}, v{vA+8+n}\nv_or3_b32 v{T}, v{T}, v{T+1}, v{T+2}")
    A(f"v_cmp_ne_u32 vcc, 0, v{T}\ns_add_u32 s97, s97, 1\ns_cmp_ge_u32 s97, {SPIN}\ns_cbranch_scc1 {lab}_x\ns_cbranch_vccnz {lab}\n{lab}_x:")


def scan_pass2(A, ldsbase):
    G0, Sr, Si, Cr, Ci = 32, 48, 52, 56, 57
    hr, hi = T, T + 1
    horner(A, Sr, Si, vP128, [(G0 + 4 * n, G0 + 4 * n + 2) for n in range(4)], T)
    gather4(A, Sr, Si)
    horner(A, Cr, Ci, vP512, [(Sr + n, Si + n) for n in range(4)], T)
    A(f"v_lshrrev_b32 v{vA}, 8, v{vLane16}\nv_mov_b32 v{hr}, v{Cr}\nv_mov_b32 v{hi}, v{Ci}")
    cur = (Cr, Ci)
    for n in range(3):
        o = (58 + 2 * n, 59 + 2 * n)
        A(f"v_cmp_eq_u32 vcc, {n+1}, v{vA}")
        A(f"v_fma_f32 v{o[0]}, v{vP32}, v{cur[0]}, v{Er+n}\nv_fma_f32 v{o[1]}, v{vP32}, v{cur[1]}, v{Ei+n}")
        A(f"v_fma_f32 v{o[0]}, -v{vP32+1}, v{cur[1]}, v{o[0]}\nv_fma_f32 v{o[1]}, v{vP32+1}, v{cur[0]}, v{o[1]}")
        A(f"v_cndmask_b32 v{hr}, v{hr}, v{o[0]}, vcc\nv_cndmask_b32 v{hi}, v{hi}, v{o[1]}, vcc")
        cur = o
    vW, vR = vA + 1, vA + 2
    A(f"v_lshlrev_b32 v{vW}, 11, v{vA}\nv_bfe_u32 v{vR}, v{vLane16}, 4, 4\nv_lshl_add_u32 v{vW}, v{vR}, 2, v{vW}\nv_add_u32 v{vW}, {ldsbase}, v{vW}")
    A(f"v_lshrrev_b32 v{vA+3}, 2, v{vR}\nv_lshlrev_b32 v{vA+3}, 11, v{vA+3}\nv_and_b32 v{vR}, 3, v{vR}\nv_lshl_add_u32 v{vR}, v{vR}, 6, v{vA+3}")
    A(f"v_lshl_add_u32 v{vR}, v{vA}, 4, v{vR}\nv_add_u32 v{vR}, {ldsbase}, v{vR}")
    a = (hr, hi)
    for t in range(32):
        A(f"v_fma_f32 v{RE+t}, v{vLr}, v{a[0]}, v{RE+t}\nv_fma_f32 v{IM+t}, v{vLr}, v{a[1]}, v{IM+t}")
        A(f"v_fma_f32 v{RE+t}, v{vLi}, v{a[1]}, v{RE+t}\nv_fma_f32 v{IM+t}, -v{vLi}, v{a[0]}, v{IM+t}")
        a = (RE + t, IM + t)
        x = T + 2 + (t & 3)
        A(f"v_cvt_pk_bf16_f32 v{x}, v{RE+t}, v{IM+t}\nds_write_b32 v{vW}, v{x} offset:{64*t}")
    A(f"s_add_u32 s36, s62, 144\ns_lshl_b32 s36, s36, 10\ns_add_u32 s36, s36, s88")
    A("s_waitcnt lgkmcnt(0)")
    for m in range(8):
        A(f"ds_read_b128 v[{96+4*m}:{99+4*m}], v{vR} offset:{256*m}")
    for m in range(8):
        A(f"s_waitcnt lgkmcnt({7-m})\nbuffer_store_dwordx4 v[{96+4*m}:{99+4*m}], v{vLane16}, s[20:23], s36 offen sc1\ns_add_u32 s36, s36, {TS}")


def ring_loop(A, name, nst, mf, reads, dma, advregs, stage, ring, vm, barpos, hooks=None, cut=None):
    adv = [f"s_add_u32 s47, s47, {stage}", f"s_cmp_eq_u32 s47, {ring*stage}", f"s_cselect_b32 s48, {-(ring-1)*stage & 0xffffffff}, s50",
           "s_cselect_b32 s47, 0, s47"] + [f"v_add_u32 v{r}, s48, v{r}" for r in advregs]
    A(f"s_mov_b32 s47, 0\ns_mov_b32 s50, {stage}\ns_mov_b32 s49, 0")
    for ln in reads(0):
        A(ln)
    A(f".p2align 6\n{name}:")
    if hooks:
        for val, lab in hooks:
            A(f"s_cmp_eq_u32 s49, {val}\ns_cbranch_scc1 {lab}\n{lab}_ret:")
    for par in (0, 1):
        M = mf(par)
        nm = len(M)
        fill = [[] for _ in range(nm)]
        for i, ln in enumerate(adv):
            fill[min(i // 3, barpos)].append(ln)
        if cut:
            fill[barpos] += [f"s_cmp_ge_u32 s49, {nst - ring - par}"] + [f"s_cselect_b32 s{c}, 0, s{c}" for c in cut]
        fill[barpos] += [f"s_waitcnt vmcnt({vm})", "s_barrier"]
        rd = reads(par ^ 1)
        span = nm - 2 - barpos
        for i, ln in enumerate(rd):
            fill[barpos + (i * span) // len(rd)].append(ln)
        for i, g in enumerate(dma):
            pos = barpos + 2 + (i * (nm - 2 - barpos)) // len(dma)
            for ln in g:
                fill[pos - 1 if " m0," in ln else pos].append(ln)
        A("s_waitcnt lgkmcnt(0)")
        for t in range(nm):
            A(M[t])
            for ln in fill[t]:
                A(ln)
    A(f"s_add_u32 s49, s49, 2\ns_cmp_lt_u32 s49, {nst}\ns_cbranch_scc1 {name}")


def gen(opts):
    A = Asm(opts)
    K = NAME + "_kernel"
    A(f".text\n.globl {K}\n.p2align 8\n.type {K},@function\n{K}:")
    A("s_cmp_ge_u32 s2, 256\ns_cbranch_scc1 L_end")
    if opts.get("cpf", 1):
        A(f"s_getpc_b64 s[6:7]\nL_pc:\ns_lshl_b32 s38, s2, 12\ns_and_b32 s38, s38, 0x8000")
        A(f"v_lshl_add_u32 v1, v0, 7, s38\nv_min_u32 v1, L_end-L_pc, v1")
        A(f"global_load_dword v222, v1, s[6:7]")
    A("s_load_dwordx2 s[52:53], s[0:1], 0\ns_load_dwordx2 s[4:5], s[0:1], 120")
    A("s_load_dwordx4 s[64:67], s[0:1], 80\ns_load_dwordx4 s[8:11], s[0:1], 24\ns_load_dwordx4 s[56:59], s[0:1], 8\ns_load_dwordx2 s[60:61], s[0:1], 56")
    A("s_load_dwordx4 s[68:71], s[0:1], 40\ns_load_dwordx2 s[72:73], s[0:1], 96")
    vT = 176
    A(f"v_lshrrev_b32 v{vT+1}, 6, v0\nv_and_b32 v{vT}, 63, v0\nv_readfirstlane_b32 s3, v{vT+1}")
    A(f"v_lshlrev_b32 v{vLane16}, 4, v{vT}")
    A("s_and_b32 s12, s2, 7\ns_lshr_b32 s13, s2, 3\ns_and_b32 s14, s13, 7\ns_lshr_b32 s13, s13, 3\ns_lshl_b32 s12, s12, 2\ns_add_u32 s15, s12, s13")
    A("s_and_b32 s16, s3, 1\ns_lshr_b32 s17, s3, 1")
    A("s_lshl_b32 s51, s14, 5\ns_add_u32 s51, s51, s15\ns_lshl_b32 s51, s51, 2\ns_add_u32 s51, s51, s3")
    X0 = 0
    A(f"s_lshl_b32 s18, s51, 1\nv_lshrrev_b32 v{vT+1}, 5, v{vT}\nv_add_u32 v{vT+2}, s18, v{vT+1}\nv_and_b32 v{vT+3}, 31, v{vT}")
    A(f"v_mul_u32_u24 v{vT+4}, 1152, v{vT+2}\nv_lshl_add_u32 v{vT+4}, v{vT+3}, 4, v{vT+4}")
    A("s_mov_b32 s74, 0xff\ns_mov_b32 s75, 0xff")
    for r in range(8, 12):
        A(f"v_mov_b32 v{r}, 0")
    A("s_waitcnt lgkmcnt(0)")
    A.srd(24, 52, 2359296)
    A(f"buffer_load_dwordx4 v[0:3], v{vT+4}, s[24:27], 0 offen\nbuffer_load_dwordx4 v[4:7], v{vT+4}, s[24:27], 0 offen offset:512")
    A(f"s_mov_b64 exec, s[74:75]\nbuffer_load_dwordx4 v[8:11], v{vT+4}, s[24:27], 0 offen offset:1024\ns_mov_b64 exec, -1")
    A(f"s_add_u32 s18, s4, {NONCE}\ns_addc_u32 s19, s5, 0\ns_load_dword s96, s[18:19], 0")
    A.stamp(0)
    A.srd(20, 4, WS_SZ)
    A("s_mul_i32 s35, s16, 5\ns_mov_b32 s42, 3641")
    for n in range(5):
        c, p, jx, k = vT + 5, vT + 6, vT + 7, vT + 8
        A(f"s_add_u32 s36, s35, {n}\ns_lshl_b32 s36, s36, 6\nv_add_u32 v{c}, s36, v{vT}")
        A(f"v_mul_lo_u32 v{p}, v{c}, s42\nv_lshrrev_b32 v{p}, 16, v{p}")
        A(f"v_mul_u32_u24 v{jx}, 18, v{p}\nv_sub_u32 v{jx}, v{c}, v{jx}")
        A(f"v_bfe_u32 v{k}, v{p}, 2, 2\nv_lshlrev_b32 v{k}, 3, v{k}\nv_lshrrev_b32 v{c}, 4, v{p}\nv_lshl_add_u32 v{k}, v{c}, 2, v{k}\nv_and_b32 v{c}, 3, v{p}\nv_add_u32 v{k}, v{k}, v{c}")
        A(f"v_mul_u32_u24 v{k}, 9216, v{k}\nv_lshl_add_u32 v{vOff+n}, v{jx}, 4, v{k}")
        if 0 < n < 4:
            A(f"v_subrev_u32 v{vOff+n}, {n*1024}, v{vOff+n}")

    def bsrc(dst, lane, t):
        A(f"v_lshrrev_b32 v{dst}, 2, v{lane}\nv_lshrrev_b32 v{t}, 4, v{lane}\nv_sub_u32 v{t}, 4, v{t}\nv_xor_b32 v{t}, v{t}, v{lane}\nv_and_b32 v{t}, 3, v{t}")
        A(f"v_mul_u32_u24 v{dst}, 1152, v{dst}\nv_lshl_add_u32 v{dst}, v{t}, 4, v{dst}")
    bsrc(vT + 5, vT, vT + 6)
    A(f"s_cmp_eq_u32 s16, 1\ns_cselect_b64 vcc, -1, 0\nv_cndmask_b32 v{vOff+4}, v{vOff+4}, v{vT+5}, vcc")
    A("s_cmp_eq_u32 s17, 1\ns_cselect_b32 s24, s66, s64\ns_cselect_b32 s25, s67, s65\ns_mov_b32 s26, 5308416\ns_mov_b32 s27, 0x20000")
    A("s_cselect_b32 s32, s10, s8\ns_cselect_b32 s33, s11, s9")
    A("s_cmp_eq_u32 s16, 1\ns_cselect_b32 s28, s32, s24\ns_cselect_b32 s29, s33, s25\ns_cselect_b32 s30, 663552, s26\ns_mov_b32 s31, 0x20000")
    A("s_cselect_b32 s41, 64, 294912")
    A("s_mul_i32 s38, s14, 294912\ns_lshl_b32 s36, s3, 12\ns_add_u32 s38, s38, s36")
    A("s_mul_i32 s39, s15, 288")
    A("s_mul_i32 s40, s15, 18432\ns_cmp_eq_u32 s16, 1\ns_cselect_b32 s40, s40, s39")
    A("s_lshl_b32 s43, s3, 12")
    A("s_mul_i32 s44, s17, 10240\ns_lshl_b32 s36, s35, 10\ns_add_u32 s44, s44, s36\ns_add_u32 s44, s44, 16384")
    A("s_add_u32 s45, s44, 4096\ns_mov_b32 s46, 0")
    slotadv = f"s_add_u32 s46, s46, {STAGE}\ns_cmp_eq_u32 s46, {R*STAGE}\ns_cselect_b32 s46, 0, s46"

    def dmaX():
        G = []
        for x in range(4):
            g = []
            if x == 0:
                g.append("s_add_u32 m0, s46, s43")
            g.append(f"buffer_load_dwordx4 v{vLane16}, s[20:23], s38 offen offset:{x*1024} sc1 lds")
            if x == 3:
                g.append("s_add_u32 s38, s38, 16384")
            G.append(g)
        return G

    def dmaW():
        G = []
        for n in range(5):
            g = []
            if n == 0:
                g.append("s_add_u32 m0, s46, s44")
            if n == 4:
                g.append("s_add_u32 m0, s46, s45")
                g.append(f"buffer_load_dwordx4 v{vOff+n}, s[28:31], s40 offen lds")
                g.append("s_add_u32 s40, s40, s41")
            else:
                g.append(f"buffer_load_dwordx4 v{vOff+n}, s[24:27], s39 offen offset:{n*1024} lds")
                if n == 3:
                    g.append("s_add_u32 s39, s39, 294912")
            G.append(g)
        return G
    A.stamp(42)
    if opts.get("trace"):
        A("v_mov_b32 v223, 0")
    WPRE = opts.get("wpre", R)
    for st in range(WPRE):
        A.emit_dma(dmaW())
        A(slotadv)
        if st == 0:
            A.stamp(43)
    A("s_mov_b32 s46, 0")
    A.srd(76, 56, 1152)
    A.srd(80, 58, 1152)
    A.srd(84, 60, 1152)
    A("s_mov_b32 s62, s15")
    cL = 192
    A(f"v_and_b32 v{vT+5}, 15, v{vT}\ns_lshl_b32 s18, s62, 4\nv_add_lshl_u32 v{vT+5}, v{vT+5}, s18, 1")
    A(f"buffer_load_ushort v{cL}, v{vT+5}, s[76:79], 0 offen\nbuffer_load_ushort v{cL+1}, v{vT+5}, s[80:83], 0 offen\nbuffer_load_ushort v{cL+2}, v{vT+5}, s[84:87], 0 offen")
    A.stamp(40)
    A(f"s_waitcnt vmcnt({3 + 5*WPRE})")
    A.stamp(41)
    F = 16
    for e in range(12):
        A(f"v_lshlrev_b32 v{F+2*e}, 16, v{e}\nv_and_b32 v{F+2*e+1}, 0xffff0000, v{e}")
    A(f"v_add_f32 v40, v{F}, v{F+1}\nv_add_f32 v41, v{F+2}, v{F+3}\nv_add_f32 v42, v{F+4}, v{F+5}\nv_add_f32 v43, v{F+6}, v{F+7}")
    for e in range(8, 24):
        A(f"v_add_f32 v{40+(e&3)}, v{40+(e&3)}, v{F+e}")
    A("v_add_f32 v40, v40, v41\nv_add_f32 v42, v42, v43\nv_add_f32 v40, v40, v42")

    def red32(r, t):
        for k in (8, 4, 2, 1):
            A(f"s_nop 1\nv_add_f32_dpp v{r}, v{r}, v{r} row_ror:{k} row_mask:0xf bank_mask:0xf")
        A(f"v_mov_b32 v{t}, v{r}\ns_nop 1\nv_permlane16_swap_b32 v{r}, v{t}\nv_add_f32 v{r}, v{r}, v{t}")
    red32(40, 41)
    A(f"v_mul_f32 v40, {f2u(1/576.0)}, v40\nv_mov_b32 v42, 0\nv_mov_b32 v43, 0")
    for e in range(24):
        if e == 16:
            A("s_mov_b64 exec, s[74:75]")
        t = 44 + (e & 3)
        A(f"v_sub_f32 v{t}, v{F+e}, v40\nv_fmac_f32 v{42+(e&1)}, v{t}, v{t}")
    A("s_mov_b64 exec, -1\nv_add_f32 v41, v42, v43")
    red32(41, 42)
    A(f"v_mul_f32 v41, {f2u(1/576.0)}, v41")
    A("v_cvt_pk_bf16_f32 v42, v40, v41\nv_lshlrev_b32 v40, 16, v42\nv_and_b32 v41, 0xffff0000, v42")
    A(f"v_add_f32 v41, {f2u(1e-5)}, v41\nv_cvt_pk_bf16_f32 v41, v41, v41\nv_lshlrev_b32 v41, 16, v41\nv_sqrt_f32 v41, v41\ns_nop 0")
    A("v_cvt_pk_bf16_f32 v41, v41, v41\nv_lshlrev_b32 v41, 16, v41\nv_rcp_f32 v41, v41")
    u, c = vT + 2, vT + 3
    s0, s1, s2_ = vT + 5, vT + 6, vT + 7
    A(f"v_bfe_u32 v{s0}, v{u}, 5, 2\nv_sub_u32 v{s1}, 4, v{s0}\nv_xor_b32 v{s1}, v{s1}, v{c}\nv_and_b32 v{s1}, 3, v{s1}")
    A(f"v_and_b32 v{s2_}, 3, v{u}\nv_lshl_add_u32 v{s0}, v{s0}, 2, v{s2_}\nv_lshl_add_u32 v{s0}, v{s0}, 2, v{s1}\nv_lshlrev_b32 v{s0}, 4, v{s0}")
    A(f"v_bfe_u32 v{s1}, v{u}, 7, 1\nv_bfe_u32 v{s2_}, v{u}, 2, 3\nv_lshl_add_u32 v{s1}, v{s1}, 3, v{s2_}\nv_lshl_add_u32 v{s0}, v{s1}, 10, v{s0}")
    A(f"v_lshrrev_b32 v{s1}, 2, v{c}\nv_lshl_add_u32 v{s0}, v{s1}, 14, v{s0}\ns_mul_i32 s18, s14, 294912")
    for n in range(3):
        if n == 2:
            A("s_mov_b64 exec, s[74:75]")
        for e in range(8 * n, 8 * n + 8):
            A(f"v_sub_f32 v{F+e}, v{F+e}, v40")
        for e in range(4 * n, 4 * n + 4):
            A(f"v_cvt_pk_bf16_f32 v{e}, v{F+2*e}, v{F+2*e+1}")
        for e in range(4 * n, 4 * n + 4):
            A(f"v_lshlrev_b32 v{F+2*e}, 16, v{e}\nv_and_b32 v{F+2*e+1}, 0xffff0000, v{e}")
        for e in range(8 * n, 8 * n + 8):
            A(f"v_mul_f32 v{F+e}, v{F+e}, v41")
        for e in range(4 * n, 4 * n + 4):
            A(f"v_cvt_pk_bf16_f32 v{e}, v{F+2*e}, v{F+2*e+1}")
        A(f"buffer_store_dwordx4 v[{4*n}:{4*n+3}], v{s0}, s[20:23], s18 offen sc1\ns_add_u32 s18, s18, 131072")
    A("s_mov_b64 exec, -1")
    A.stamp(1)
    for i in range(160):
        A(f"v_accvgpr_write_b32 a{i}, 0")
    A("s_waitcnt vmcnt(0) lgkmcnt(0)\ns_mul_i32 s96, s96, 1664525\ns_add_u32 s96, s96, 1013904223")
    A(f"s_lshl_b32 s18, s51, 5\ns_add_u32 s18, s18, {F0}")
    A.flag("s18", vT + 5)
    A.stamp(2)
    for i in range(160):
        A(f"v_mov_b32 v{i}, 0")
    ssm_consts(A, cL, cL + 1, cL + 2, vT + 5)
    A(f"v_and_b32 v{vT+5}, 15, v{vT}\nv_lshrrev_b32 v{vT+6}, 2, v{vT+5}\nv_sub_u32 v{vT+6}, 4, v{vT+6}\nv_lshrrev_b32 v{vT+7}, 4, v{vT}\nv_xor_b32 v{vT+6}, v{vT+6}, v{vT+7}\nv_and_b32 v{vT+6}, 3, v{vT+6}")
    A(f"v_lshl_add_u32 v{vT+5}, v{vT+5}, 2, v{vT+6}\nv_lshlrev_b32 v{vSw}, 4, v{vT+5}")
    A(f"s_lshl_b32 s36, s17, 13\nv_add_u32 v{vXrd}, s36, v{vSw}")
    A(f"v_lshrrev_b32 v{vT+5}, 2, v{vT}\nv_mul_u32_u24 v{vT+5}, 288, v{vT+5}\nv_and_b32 v{vT+6}, 3, v{vT}\nv_lshl_add_u32 v{vT+5}, v{vT+6}, 3, v{vT+5}")
    A("s_and_b32 s18, s15, 1\ns_cmp_eq_u32 s18, 0\ns_cselect_b32 s36, 4, 1\ns_cselect_b32 s37, 0, 5\ns_cselect_b32 s19, 8, 0")
    A("s_cmp_eq_u32 s16, 0\ns_cselect_b32 s54, s36, s37")
    A(f"s_lshl_b32 s36, s54, 5\ns_add_u32 s36, s36, 16384\nv_add_u32 v{vWrd}, s36, v{vT+5}")
    A(f"s_lshl_b32 s36, s19, 5\ns_add_u32 s36, s36, 16384\nv_add_u32 v{vRd5}, s36, v{vT+5}")
    A(f"v_add_u32 v{vT+5}, {16384+9216}, v{vSw}")
    A(f"s_cmp_eq_u32 s16, 1\ns_cselect_b64 vcc, -1, 0\nv_cndmask_b32 v{vRd5}, v{vRd5}, v{vT+5}, vcc")
    vPW, vPC = 240, 243
    A("s_mov_b32 s42, 5462")
    for n in range(3):
        z, p, q = vT + 5, vT + 6, vT + 7
        A(f"v_add_u32 v{z}, {64*n}, v{vT}\nv_mul_lo_u32 v{p}, v{z}, s42\nv_lshrrev_b32 v{p}, 16, v{p}\nv_mul_u32_u24 v{q}, 12, v{p}\nv_sub_u32 v{z}, v{z}, v{q}")
        A(f"v_lshrrev_b32 v{q}, 1, v{p}\nv_and_b32 v{q}, 2, v{q}\nv_xor_b32 v{z}, v{z}, v{q}\nv_mul_u32_u24 v{p}, 1152, v{p}\nv_lshl_add_u32 v{vPW+n}, v{z}, 4, v{p}")
    A(f"v_and_b32 v{vT+5}, 15, v{vT}\nv_mul_u32_u24 v{vT+5}, 1152, v{vT+5}\nv_lshrrev_b32 v{vT+6}, 4, v{vT}\nv_lshl_add_u32 v{vPC}, v{vT+6}, 3, v{vT+5}")
    A.srd(76, 72, 5308416)
    A.srd(80, 68, 663552)
    A.srd(84, 70, 663552)
    A(f"v_bfe_u32 v{vT+5}, v{vT}, 3, 2\nv_and_b32 v{vT+6}, 7, v{vT}\nv_lshl_add_u32 v{vT+5}, v{vT+5}, 4, v{vT+6}\nv_lshlrev_b32 v{vT+5}, 5, v{vT+5}")
    A(f"s_lshl_b32 s18, s14, 12\ns_lshl_b32 s19, s17, 11\ns_add_u32 s18, s18, s19\ns_lshl_b32 s19, s16, 8\ns_add_u32 s18, s18, s19\ns_add_u32 s18, s18, {F0}")
    A.poll(vT + 5, vT + 6, "s18")
    A.stamp(3)
    A(f"v_mov_b32 v{vT+5}, {OOB}")
    for st in range(R):
        if st >= WPRE:
            A.emit_dma(dmaW())
        elif st >= 2:
            for _ in range(5):
                A(f"buffer_load_dword v222, v{vT+5}, s[20:23], 0 offen")
        A.emit_dma(dmaX())
        A(slotadv)
    NM, GV, WV, XA = 8, 0, 160, 160
    D = dmaX() + dmaW()
    D[-1].append(slotadv)
    nd = len(D)

    def wreads(role, jj):
        u, isU = jj >> 1, jj & 1
        base = WV + 4 * jj
        if u == 4:
            if role == 1:
                return [f"ds_read_b128 v[{base}:{base+3}], v{vRd5} offset:{isU*10240}"]
            return [f"ds_read_b64_tr_b16 v[{base+2*t}:{base+2*t+1}], v{vRd5} offset:{isU*10240 + t*16*288}" for t in range(2)]
        return [f"ds_read_b64_tr_b16 v[{base+2*t}:{base+2*t+1}], v{vWrd} offset:{isU*10240 + u*32 + t*16*288}" for t in range(2)]

    def xread(par, m):
        b = XA + (par * NM + m) * 4
        return f"ds_read_b128 a[{b}:{b+3}], v{vXrd} offset:{m*1024}"

    def mfma(role, jj, m, par):
        u, isU = jj >> 1, jj & 1
        c = (u * NM + m) * 4
        acc = f"a[{c}:{c+3}]" if isU else f"v[{GV+c}:{GV+c+3}]"
        w = f"v[{WV+4*jj}:{WV+4*jj+3}]"
        xb = XA + (par * NM + m) * 4
        x = f"a[{xb}:{xb+3}]"
        if role == 1 and u == 4:
            return f"v_mfma_f32_16x16x32_bf16 {acc}, {x}, {w}, {acc}"
        return f"v_mfma_f32_16x16x32_bf16 {acc}, {w}, {x}, {acc}"

    adv = [f"s_add_u32 s47, s47, {STAGE}", f"s_cmp_eq_u32 s47, {R*STAGE}", f"s_cselect_b32 s48, {-(R-1)*STAGE & 0xffffffff}, s50",
           "s_cselect_b32 s47, 0, s47", f"v_add_u32 v{vXrd}, s48, v{vXrd}", f"v_add_u32 v{vWrd}, s48, v{vWrd}", f"v_add_u32 v{vRd5}, s48, v{vRd5}"]
    A(f"s_mov_b32 s47, 0\ns_mov_b32 s50, {STAGE}\ns_mov_b32 s49, 0")
    A(f"s_waitcnt vmcnt({22 if WPRE >= 2 else 27})\ns_barrier")
    for m in range(NM):
        A(xread(0, m))
    for jj in range(8):
        for ln in wreads(0, jj):
            A(ln)
    A("s_cmp_eq_u32 s16, 1\ns_cbranch_scc1 P1_role1")
    PL, PSV = opts.get("packload", 2), opts.get("packstore", 8)
    for role in (0, 1):
        A(f"P1_role{role}:")
        for jj in (8, 9):
            for ln in wreads(role, jj):
                A(ln)
        A("s_waitcnt lgkmcnt(0)")
        A.stamp(4)
        A.cstamp(0)
        A(f".p2align 6\nP1_loop{role}:")
        for par in (0, 1):
            nm = 10 * NM
            fill = [[] for _ in range(nm)]
            for i, ln in enumerate(adv):
                fill[min(i // 2, NM - 2)].append(ln)
            if opts.get("trace"):
                fill[NM - 1].append("s_memrealtime s[98:99]")
            fill[NM - 1].append(f"s_waitcnt vmcnt({(R-2)*nd}) lgkmcnt(0)")
            fill[NM - 1].append("s_barrier")
            if opts.get("trace"):
                fill[NM - 1].append(f"s_add_u32 m0, s49, {par}\ns_nop 0\nv_writelane_b32 v223, s98, m0")
            for jj in range(10):
                for t, ln in enumerate(wreads(role, jj)):
                    pos = (jj + 1) * NM - 1 + t
                    fill[min(pos, nm - 1)].append(ln)
            for m in range(NM):
                fill[(1 + m) * NM + 2].append(xread(par ^ 1, m))
            for i, g in enumerate(D):
                pos = (1 + i) * NM + NM // 2
                for ln in g:
                    fill[pos - 1 if " m0," in ln else pos].append(ln)
            if par == 0:
                fill[NM + 1].append(f"s_cmp_eq_u32 s49, {PL}\ns_cbranch_scc1 P1_pl{role}\nP1_pl{role}_ret:")
                fill[NM + 2].append(f"s_cmp_eq_u32 s49, {PSV}\ns_cbranch_scc1 P1_ps{role}\nP1_ps{role}_ret:")
            seq = [ln for f in fill for ln in f if ln.startswith("ds_read")]
            lastx = max(i for i, ln in enumerate(seq) if " a[" in ln)
            A(f"s_waitcnt lgkmcnt({len(seq) - 1 - lastx})")
            for t in range(nm):
                A(mfma(role, t // NM, t % NM, par))
                for ln in fill[t]:
                    A(ln)
        A(f"s_add_u32 s49, s49, 2\ns_cmp_lt_u32 s49, 18\ns_cbranch_scc1 P1_loop{role}")
        A("s_branch P1_epi")
    for role in (0, 1):
        A(f"P1_pl{role}:")
        A("s_mul_i32 s12, s51, 10923\ns_lshr_b32 s12, s12, 16\ns_mul_i32 s13, s12, 6\ns_sub_u32 s13, s51, s13")
        A("s_mul_i32 s18, s12, 36864\ns_mul_i32 s19, s13, 192\ns_add_u32 s18, s18, s19\ns_add_u32 s19, s18, 18432")
        for n in range(6):
            A(f"buffer_load_dwordx4 a[{224+4*n}:{227+4*n}], v{vPW+n%3}, s[76:79], s{18 + n//3} offen")
        for k in range(2):
            A(f"s_add_u32 s18, s51, {1024*k}\ns_mul_i32 s19, s18, 1821\ns_lshr_b32 s19, s19, 16\ns_mul_i32 s34, s19, 36\ns_sub_u32 s34, s18, s34")
            A(f"s_mul_i32 s34, s34, 18432\ns_lshl_b32 s19, s19, 5\ns_add_u32 s19, s19, s34\ns_cmp_ge_u32 s18, 1296\ns_cselect_b32 s19, {OOB}, s19")
            A(f"buffer_load_dwordx2 v[{224+4*k}:{225+4*k}], v{vPC}, s[80:83], s19 offen\nbuffer_load_dwordx2 v[{226+4*k}:{227+4*k}], v{vPC}, s[84:87], s19 offen")
        A(f"s_branch P1_pl{role}_ret")
        A(f"P1_ps{role}:")
        A(f"s_mul_i32 s18, s13, 144\ns_add_u32 s18, s18, s12\ns_mul_i32 s18, s18, 6144\ns_add_u32 s18, s18, {WP}\ns_cmp_ge_u32 s51, 864\ns_cselect_b32 s18, {OOB}, s18\ns_add_u32 s19, s18, 3072")
        for n in range(6):
            A(f"buffer_store_dwordx4 a[{224+4*n}:{227+4*n}], v{vLane16}, s[20:23], s{18 + n//3} offen offset:{(n%3)*1024} sc1")
        A("s_mov_b32 s34, 0x05040100\ns_mov_b32 s35, 0x07060302")
        for k in range(2):
            i0, o = 224 + 4 * k, 232 + 4 * k
            A(f"v_perm_b32 v{o}, v{i0+2}, v{i0}, s34\nv_perm_b32 v{o+1}, v{i0+2}, v{i0}, s35\nv_perm_b32 v{o+2}, v{i0+3}, v{i0+1}, s34\nv_perm_b32 v{o+3}, v{i0+3}, v{i0+1}, s35")
            A(f"s_add_u32 s18, s51, {1024*k}\ns_lshl_b32 s19, s18, 10\ns_add_u32 s19, s19, {CP}\ns_cmp_ge_u32 s18, 1296\ns_cselect_b32 s19, {OOB}, s19")
            A(f"buffer_store_dwordx4 v[{o}:{o+3}], v{vLane16}, s[20:23], s19 offen sc1")
        if opts.get("bpf", 1):
            A("s_lshr_b32 s18, s2, 3\ns_lshl_b32 s18, s18, 2\ns_add_u32 s18, s18, s3\ns_cmp_ge_u32 s18, 64\ns_cselect_b32 s80, s10, s8\ns_cselect_b32 s81, s11, s9")
            A(f"s_and_b32 s18, s18, 63\ns_add_u32 s18, s18, 512\ns_mul_i32 s18, s18, 1152\nv_lshlrev_b32 v224, 3, v{vLane16}\nv_min_u32 v224, 1024, v224")
            A("buffer_load_dword v222, v224, s[80:83], s18 offen")
        A(f"s_branch P1_ps{role}_ret")
    A("P1_epi:")
    A("s_waitcnt vmcnt(0) lgkmcnt(0)\ns_barrier")
    A.stamp(5)
    A.cstamp(1)
    if opts.get("trace"):
        A(f"s_lshl_b32 s100, s2, 10\ns_lshl_b32 s101, s3, 8\ns_add_u32 s100, s100, s101\ns_add_u32 s100, s100, {TS_OFF + 0x100000}")
        A(f"v_lshrrev_b32 v220, 2, v{vLane16}\nv_add_u32 v220, s100, v220\nglobal_store_dword v220, v223, s[4:5]")
    A("s_cmp_lg_u32 s3, 0\ns_cbranch_scc1 P1_nofp")
    A(f"s_lshl_b32 s18, s2, 2\ns_add_u32 s18, s18, {FP}")
    A.flag("s18", T)
    A("P1_nofp:")
    A(f"s_lshl_b32 s36, s14, 1\ns_add_u32 s55, s36, s17\ns_mul_i32 s88, s55, {8*TS}\ns_add_u32 s88, s88, {H2}")
    A("s_lshr_b32 s36, s15, 1\ns_mul_i32 s36, s36, 9\ns_and_b32 s18, s15, 1\ns_mul_i32 s37, s18, 9\ns_add_u32 s37, s37, s54\ns_lshr_b32 s37, s37, 1")
    A("s_add_u32 s37, s37, s36\ns_lshl_b32 s37, s37, 10\ns_add_u32 s89, s88, s37")
    A("s_add_u32 s36, s36, 4\ns_lshl_b32 s36, s36, 10\ns_add_u32 s36, s36, s88\ns_lshl_b32 s18, s18, 3\ns_add_u32 s36, s36, s18")
    TP = 188

    def pair_cvt(m, pr):
        c0, c1 = ((2 * pr) * NM + m) * 4, ((2 * pr + 1) * NM + m) * 4
        for r in range(4):
            A(f"v_accvgpr_read_b32 v{TP+r}, a{c0+r}")
        for r in range(4):
            A(f"v_accvgpr_read_b32 v{TP+4+r}, a{c1+r}")
        for r in range(4):
            A(f"v_mul_f32 v{TP+r}, v{TP+r}, v{c0+r}")
        for r in range(4):
            A(f"v_mul_f32 v{TP+4+r}, v{TP+4+r}, v{c1+r}")
        A(f"v_cvt_pk_bf16_f32 v{c0}, v{TP}, v{TP+1}\nv_cvt_pk_bf16_f32 v{c0+1}, v{TP+2}, v{TP+3}")
        A(f"v_cvt_pk_bf16_f32 v{c0+2}, v{TP+4}, v{TP+5}\nv_cvt_pk_bf16_f32 v{c0+3}, v{TP+6}, v{TP+7}")

    def pair_store(m, pr):
        c0 = ((2 * pr) * NM + m) * 4
        A(f"buffer_store_dwordx4 v[{c0}:{c0+3}], v{vLane16}, s[20:23], s89 offen offset:{pr*1024} sc1")
        if pr == 1:
            A(f"s_add_u32 s89, s89, {TS}")
    A("s_cmp_eq_u32 s16, 1\ns_cbranch_scc1 P1_epi1")
    for m in range(8):
        for pr in range(2):
            pair_cvt(m, pr)
            pair_store(m, pr)
        c = (4 * NM + m) * 4
        for r in range(4):
            A(f"v_accvgpr_read_b32 v{TP+r}, a{c+r}")
        for r in range(4):
            A(f"v_mul_f32 v{TP+r}, v{TP+r}, v{c+r}")
        A(f"v_cvt_pk_bf16_f32 v{c}, v{TP}, v{TP+1}\nv_cvt_pk_bf16_f32 v{c+1}, v{TP+2}, v{TP+3}")
        A(f"buffer_store_dwordx2 v[{c}:{c+1}], v{vLane16}, s[20:23], s36 offen sc1\ns_add_u32 s36, s36, {TS}")
    A.stamp(36)
    A("s_branch P1_done")
    A("P1_epi1:")
    for i in range(32):
        A(f"v_accvgpr_read_b32 v{IM+i}, a{128+i}")
    scan_pass1(A)
    A.stamp(32)
    for m in range(8):
        for pr in range(2):
            pair_cvt(m, pr)
    A.stamp(33)
    scan_poll(A)
    A.stamp(34)
    for m in range(8):
        for pr in range(2):
            pair_store(m, pr)
    A.stamp(35)
    A(f"s_lshl_b32 s34, s17, 13\ns_add_u32 s34, s34, {TRB}")
    scan_pass2(A, "s34")
    A("P1_done:")
    A.stamp(6)
    A(f"s_mov_b32 s19, {FP}\nbuffer_load_dwordx4 v[{T}:{T+3}], v{vLane16}, s[20:23], s19 offen sc1")
    A("s_and_b32 s12, s2, 7\ns_lshr_b32 s13, s2, 3")
    A("s_waitcnt vmcnt(0)\ns_barrier")
    A("s_cmp_lg_u32 s3, 0\ns_cbranch_scc1 P1_nof1")
    A(f"s_lshl_b32 s18, s51, 5\ns_add_u32 s18, s18, {F1}")
    A.flag("s18", T + 4)
    A("P1_nof1:")
    A.stamp(7)
    for k in range(4):
        A(f"v_xor_b32 v{T+k}, s96, v{T+k}")
    A(f"v_or3_b32 v{T}, v{T}, v{T+1}, v{T+2}\nv_or_b32 v{T}, v{T}, v{T+3}\nv_cmp_ne_u32 vcc, 0, v{T}\ns_cbranch_vccz P1_fpok")
    A.poll(vLane16, T, "s19", n=4)
    A("P1_fpok:")
    A("s_or_b32 s18, s2, s3\ns_cmp_lg_u32 s18, 0\ns_cbranch_scc1 P1_notag")
    A(f"s_mov_b32 s18, {NONCE}")
    A.flag("s18", T + 4)
    A("P1_notag:")
    A("s_mov_b32 s24, s20\ns_mov_b32 s25, s21\ns_mov_b32 s26, s22\ns_mov_b32 s27, 0x20000")
    A(f"s_lshl_b32 s90, s2, 7\ns_lshl_b32 s18, s3, 5\ns_add_u32 s90, s90, s18\ns_add_u32 s90, s90, {F2}")
    A("s_mov_b32 s46, 0")
    lane = 199
    A(f"v_lshrrev_b32 v{lane}, 4, v{vLane16}")
    A("s_cmp_ge_u32 s13, 30\ns_cbranch_scc1 P2_left\ns_cmp_ge_u32 s13, 24\ns_cbranch_scc1 P2_ssm")

    S2, R2 = 28672, 5
    A("s_mul_i32 s14, s13, 43\ns_lshr_b32 s14, s14, 8\ns_mul_i32 s15, s14, 6\ns_sub_u32 s15, s13, s15")
    A("s_lshr_b32 s18, s12, 1\ns_lshl_b32 s18, s18, 2\ns_add_u32 s14, s14, s18\ns_and_b32 s54, s12, 1")
    vH1, vRA, vRB, vRW = 160, 161, 162, 163
    adv2 = f"s_add_u32 s46, s46, {S2}\ns_cmp_eq_u32 s46, {R2*S2}\ns_cselect_b32 s46, 0, s46"
    A(f"s_mul_i32 s39, s15, {4608*192}\ns_mul_i32 s18, s54, {2304*192}\ns_add_u32 s39, s39, s18\ns_mul_i32 s44, s3, 3072\ns_add_u32 s39, s39, s44\ns_add_u32 s39, s39, {WP}")
    A("s_add_u32 s44, s44, 16384\ns_lshl_b32 s43, s3, 12")
    A(f"s_lshl_b32 s38, s14, 3\ns_lshl_b32 s18, s3, 1\ns_add_u32 s38, s38, s18\ns_mul_i32 s38, s38, {TS}\ns_mul_i32 s18, s54, {72*1024}\ns_add_u32 s38, s38, s18\ns_add_u32 s38, s38, {H2}")
    A(f"v_add_u32 v{vH1}, {TS - 2048}, v{vLane16}")

    def g_dmaH():
        G = []
        for x in range(4):
            g = []
            if x == 0:
                g.append("s_add_u32 m0, s46, s43")
            g.append(f"buffer_load_dwordx4 v{vLane16 if x < 2 else vH1}, s[24:27], s38 offen offset:{x*1024} sc1 lds")
            if x == 3:
                g.append("s_add_u32 s38, s38, 2048")
            G.append(g)
        return G

    def g_dmaW():
        G = []
        for x in range(3):
            g = []
            if x == 0:
                g.append("s_add_u32 m0, s46, s44")
            g.append(f"buffer_load_dwordx4 v{vLane16}, s[24:27], s39 offen offset:{x*1024} sc1 lds")
            if x == 2:
                g.append("s_add_u32 s39, s39, 12288")
            G.append(g)
        return G
    for st in range(R2):
        A.emit_dma(g_dmaW())
        A(adv2)
    vX, vXNr, vD, vO = 48, 60, 72, 78
    A("s_load_dwordx2 s[56:57], s[0:1], 64\ns_load_dwordx2 s[58:59], s[0:1], 104")
    t = 176
    A(f"v_and_b32 v{t}, 15, v{lane}\nv_lshrrev_b32 v{t+1}, 4, v{lane}\nv_lshrrev_b32 v{t+2}, 2, v{t}\nv_lshlrev_b32 v{t+2}, 5, v{t+2}\nv_and_b32 v{t+3}, 3, v{t}\nv_add_u32 v{t+2}, v{t+2}, v{t+3}")
    A("s_lshl_b32 s34, s17, 1\ns_add_u32 s34, s34, s54\ns_lshl_b32 s34, s34, 1")
    A("s_lshl_b32 s18, s14, 7\ns_lshl_b32 s19, s34, 2\ns_add_u32 s18, s18, s19")
    A("s_mul_i32 s35, s15, 96\ns_mul_i32 s19, s16, 48\ns_add_u32 s35, s35, s19")
    A(f"v_add_u32 v{t+2}, s18, v{t+2}\nv_mul_u32_u24 v{t+2}, 576, v{t+2}\nv_lshl_add_u32 v{t+3}, v{t+1}, 2, s35\nv_add_u32 v{t+2}, v{t+2}, v{t+3}")
    A(f"v_lshlrev_b32 v{vO}, 2, v{t+2}\nv_add_u32 v{vO+1}, {4*576*4}, v{vO}\nv_lshlrev_b32 v{t+2}, 1, v{t+2}\nv_lshlrev_b32 v{t+3}, 1, v{t+3}")
    A.srd(28, 52, 2359296)
    A(f"s_mov_b32 s18, {4*1152}")
    for k in range(2):
        for dr in range(3):
            r = vX + (k * 3 + dr) * 2
            A(f"buffer_load_dwordx2 v[{r}:{r+1}], v{t+2}, s[28:31], {'0' if k == 0 else 's18'} offen offset:{32*dr}")
    A("s_waitcnt lgkmcnt(0)")
    A.srd(76, 56, 1152)
    A.srd(80, 58, 4718592)
    for dr in range(3):
        A(f"buffer_load_dwordx2 v[{vD+2*dr}:{vD+2*dr+1}], v{t+3}, s[76:79], 0 offen offset:{32*dr}")
    A(f"v_lshrrev_b32 v{t+4}, 2, v{t}\nv_sub_u32 v{t+4}, 4, v{t+4}\nv_lshrrev_b32 v{t+5}, 1, v{t+1}\nv_xor_b32 v{t+4}, v{t+4}, v{t+5}\nv_and_b32 v{t+4}, 3, v{t+4}")
    A(f"v_lshl_add_u32 v{t+4}, v{t}, 2, v{t+4}\nv_lshlrev_b32 v{t+4}, 4, v{t+4}\nv_and_b32 v{t+5}, 1, v{t+1}\nv_lshl_add_u32 v{t+4}, v{t+5}, 3, v{t+4}")
    A("s_lshr_b32 s18, s14, 1\ns_mul_i32 s18, s18, 18\ns_and_b32 s19, s14, 1\ns_lshl_b32 s19, s19, 3\ns_add_u32 s19, s19, s34\ns_lshl_b32 s19, s19, 10")
    A("s_lshr_b32 s36, s35, 4")
    for dr in range(3):
        A(f"s_add_u32 s37, s36, {dr}\ns_and_b32 s40, s37, 1\ns_lshl_b32 s40, s40, 5\ns_lshr_b32 s37, s37, 1\ns_add_u32 s37, s37, s18\ns_lshl_b32 s37, s37, 14\ns_add_u32 s37, s37, s19")
        A(f"v_xor_b32 v{t+6+dr}, s40, v{t+4}\nv_add_u32 v{t+6+dr}, s37, v{t+6+dr}")
    A(f"s_lshl_b32 s18, s34, 11\nv_add_u32 v{vRA}, s18, v{vLane16}\ns_xor_b32 s18, s18, 4096\nv_add_u32 v{vRB}, s18, v{vLane16}")
    A(f"v_lshrrev_b32 v{t+4}, 2, v{lane}\nv_mul_u32_u24 v{t+4}, 192, v{t+4}\nv_and_b32 v{t+5}, 3, v{lane}\nv_lshl_add_u32 v{t+4}, v{t+5}, 3, v{t+4}\nv_add_u32 v{t+4}, 16384, v{t+4}")
    A(f"v_bfe_u32 v{t+5}, v{lane}, 4, 1\ns_mul_i32 s18, s16, 3")
    for dr in range(3):
        A(f"s_add_u32 s19, s18, {dr}\nv_xor_b32 v{t+9}, s19, v{t+5}\nv_lshl_add_u32 v{vRW+dr}, v{t+9}, 5, v{t+4}")
    for i in range(48):
        A(f"v_mov_b32 v{i}, 0")
    A(f"v_lshlrev_b32 v{t+9}, 7, v{t}\ns_lshr_b32 s18, s14, 1\ns_lshl_b32 s18, s18, 12\ns_lshl_b32 s19, s54, 11\ns_add_u32 s18, s18, s19\ns_add_u32 s18, s18, {F1}")
    A.poll(t + 9, t + 10, "s18")
    A.stamp(8)
    A(f"v_mov_b32 v{t+9}, {OOB}")
    for st in range(R2):
        A.emit_dma(g_dmaH())
        A(adv2)
        if st in (1, 2):
            for dr in range(3):
                r = vXNr + ((st - 1) * 3 + dr) * 2
                A(f"buffer_load_dwordx2 v[{r}:{r+1}], v{t+6+dr}, s[20:23], 0 offen offset:{(st-1)*1024} sc1")
        if st == 3:
            for _ in range(3):
                A(f"buffer_load_dword v222, v{t+9}, s[20:23], 0 offen")
    A("s_waitcnt vmcnt(25)\ns_barrier")
    A.stamp(9)
    A.cstamp(2)

    def g_reads(par):
        b = par * 56
        L = []
        for ks in range(2):
            for tt in range(4):
                r = b + (ks * 4 + tt) * 4
                L.append(f"ds_read_b128 a[{r}:{r+3}], v{vRA if tt < 2 else vRB} offset:{(tt&1)*2048 + ks*1024}")
            for dr in range(3):
                r = b + 32 + (ks * 3 + dr) * 4
                for h2 in range(2):
                    L.append(f"ds_read_b64_tr_b16 a[{r+2*h2}:{r+2*h2+1}], v{vRW+dr} offset:{ks*6144 + h2*3072}")
        return L

    def g_mf(par):
        b = par * 56
        M = []
        for ks in range(2):
            for dr in range(3):
                for tt in range(4):
                    c = (tt * 3 + dr) * 4
                    w, hh = b + 32 + (ks * 3 + dr) * 4, b + (ks * 4 + tt) * 4
                    M.append(f"v_mfma_f32_16x16x32_bf16 v[{c}:{c+3}], a[{w}:{w+3}], a[{hh}:{hh+3}], v[{c}:{c+3}]")
        return M
    G2 = g_dmaH() + g_dmaW()
    G2[-1].append(adv2)
    ring_loop(A, "P2g_loop", 36, g_mf, g_reads, G2, [vRA, vRB, vRW, vRW + 1, vRW + 2], S2, R2, 21, 2, cut=[26])
    A.stamp(10)
    A.cstamp(3)
    A(f"s_lshl_b32 s18, s2, 2\ns_add_u32 s18, s18, s3\ns_mul_i32 s36, s18, 6144\ns_add_u32 s36, s36, {EX}\ns_add_u32 s37, s36, 3072")
    A(f"s_xor_b32 s18, s18, 4\ns_mul_i32 s40, s18, 6144\ns_add_u32 s40, s40, {EX}\ns_add_u32 s41, s40, 3072")
    for k in range(6):
        A(f"buffer_store_dwordx4 v[{24+4*k}:{27+4*k}], v{vLane16}, s[20:23], s{36 + k//3} offen offset:{(k%3)*1024} sc1")
    A("s_and_b32 s18, s14, 1\ns_mul_i32 s18, s18, 3\ns_lshr_b32 s19, s15, 1\ns_add_u32 s18, s18, s19\ns_add_u32 s18, s18, 24\ns_lshl_b32 s18, s18, 3\ns_lshr_b32 s19, s14, 1\ns_add_u32 s18, s18, s19")
    A(f"s_lshl_b32 s18, s18, 2\ns_lshl_b32 s19, s17, 1\ns_add_u32 s18, s18, s19\ns_and_b32 s19, s15, 1\ns_add_u32 s18, s18, s19\ns_lshl_b32 s18, s18, 5\ns_add_u32 s18, s18, {F2}")
    A(f"s_xor_b32 s19, s90, 128\nv_mov_b32 v{t}, s19\nv_mov_b32 v{t+1}, s18\nv_and_b32 v{t+2}, 1, v{lane}\nv_cmp_eq_u32 vcc, 1, v{t+2}\ns_nop 1\nv_cndmask_b32 v{t}, v{t}, v{t+1}, vcc")
    A(f"s_lshl_b32 s18, s14, 3\ns_add_u32 s18, s18, s34\ns_mul_i32 s18, s18, 36\ns_lshr_b32 s19, s35, 4\ns_add_u32 s18, s18, s19\ns_lshl_b32 s18, s18, 10\ns_add_u32 s42, s18, {YY}\ns_add_u32 s43, s42, 36864")
    A("s_waitcnt vmcnt(0) lgkmcnt(0)")
    A.flag("s90", t + 4)
    A.stamp(11)
    for k in range(6):
        dr = k % 3
        c = 80 + 4 * k
        A(f"v_lshlrev_b32 v{c}, 16, v{vXNr+2*k}\nv_and_b32 v{c+1}, 0xffff0000, v{vXNr+2*k}\nv_lshlrev_b32 v{c+2}, 16, v{vXNr+2*k+1}\nv_and_b32 v{c+3}, 0xffff0000, v{vXNr+2*k+1}")
        A(f"v_lshlrev_b32 v{t+4}, 16, v{vD+2*dr}\nv_and_b32 v{t+5}, 0xffff0000, v{vD+2*dr}\nv_lshlrev_b32 v{t+6}, 16, v{vD+2*dr+1}\nv_and_b32 v{t+7}, 0xffff0000, v{vD+2*dr+1}")
        for r in range(4):
            A(f"v_mul_f32 v{c+r}, v{c+r}, v{t+4+r}")
        A(f"v_cvt_pk_bf16_f32 v{t+4}, v{c}, v{c+1}\nv_cvt_pk_bf16_f32 v{t+5}, v{c+2}, v{c+3}")
        A(f"v_lshlrev_b32 v{c}, 16, v{t+4}\nv_and_b32 v{c+1}, 0xffff0000, v{t+4}\nv_lshlrev_b32 v{c+2}, 16, v{t+5}\nv_and_b32 v{c+3}, 0xffff0000, v{t+5}")
        x = 104 + 4 * k
        A(f"v_lshlrev_b32 v{x}, 16, v{vX+2*k}\nv_and_b32 v{x+1}, 0xffff0000, v{vX+2*k}\nv_lshlrev_b32 v{x+2}, 16, v{vX+2*k+1}\nv_and_b32 v{x+3}, 0xffff0000, v{vX+2*k+1}")
    A.poll(t, t + 1)
    A.stamp(12)
    for k in range(6):
        A(f"buffer_load_dwordx4 v[{24+4*k}:{27+4*k}], v{vLane16}, s[20:23], s{40 + k//3} offen offset:{(k%3)*1024} sc1")
        A(f"buffer_load_dwordx4 v[{128+4*k}:{131+4*k}], v{vLane16}, s[20:23], s{42 + k//3} offen offset:{(k%3)*1024} sc1")
    NL2E = f2u(-LOG2E)
    for k in range(6):
        g, p, y, c, x, a, b = 4 * k, 24 + 4 * k, 128 + 4 * k, 80 + 4 * k, 104 + 4 * k, t + 4, t + 8
        A(f"s_waitcnt vmcnt({10 - k})")
        for r in range(4):
            A(f"v_add_f32 v{g+r}, v{g+r}, v{p+r}")
        A(f"v_cvt_pk_bf16_f32 v{a}, v{g}, v{g+1}\nv_cvt_pk_bf16_f32 v{a+1}, v{g+2}, v{g+3}")
        A(f"v_lshlrev_b32 v{g}, 16, v{a}\nv_and_b32 v{g+1}, 0xffff0000, v{a}\nv_lshlrev_b32 v{g+2}, 16, v{a+1}\nv_and_b32 v{g+3}, 0xffff0000, v{a+1}")
        for r in range(4):
            A(f"v_mul_f32 v{b+r}, {NL2E}, v{g+r}")
        for r in range(4):
            A(f"v_exp_f32 v{b+r}, v{b+r}")
        for r in range(4):
            A(f"v_add_f32 v{y+r}, v{y+r}, v{c+r}")
        for r in range(4):
            A(f"v_add_f32 v{b+r}, 1.0, v{b+r}")
        for r in range(4):
            A(f"v_rcp_f32 v{b+r}, v{b+r}")
        A("s_nop 0")
        for r in range(4):
            A(f"v_mul_f32 v{g+r}, v{g+r}, v{b+r}")
        A(f"v_cvt_pk_bf16_f32 v{a}, v{g}, v{g+1}\nv_cvt_pk_bf16_f32 v{a+1}, v{g+2}, v{g+3}")
        A(f"v_lshlrev_b32 v{g}, 16, v{a}\nv_and_b32 v{g+1}, 0xffff0000, v{a}\nv_lshlrev_b32 v{g+2}, 16, v{a+1}\nv_and_b32 v{g+3}, 0xffff0000, v{a+1}")
        for r in range(4):
            A(f"v_fma_f32 v{y+r}, v{y+r}, v{g+r}, v{x+r}")
        A(f"buffer_store_dwordx4 v[{y}:{y+3}], v{vO + k//3}, s[80:83], 0 offen offset:{64*(k%3)}" + {0: "", 1: " sc1", 2: " nt", 3: " sc0 sc1"}[opts.get("outsc", 0)])
    if opts.get("stamp"):
        A("s_waitcnt vmcnt(0)")
    A.stamp(13)
    A("s_endpgm")

    A("P2_ssm:")
    S3, R3 = 20480, 6
    A("s_sub_u32 s18, s13, 24\ns_cmp_ge_u32 s18, 3\ns_cselect_b32 s19, 1, 0\ns_mul_i32 s15, s19, 3\ns_sub_u32 s15, s18, s15\ns_lshl_b32 s14, s12, 1\ns_add_u32 s14, s14, s19")
    adv3 = f"s_add_u32 s46, s46, {S3}\ns_cmp_eq_u32 s46, {R3*S3}\ns_cselect_b32 s46, 0, s46"
    A(f"s_mul_i32 s39, s15, 12288\ns_mul_i32 s44, s3, 3072\ns_add_u32 s39, s39, s44\ns_add_u32 s39, s39, {CP}\ns_add_u32 s44, s44, 8192\ns_lshl_b32 s43, s3, 11")
    A(f"s_lshl_b32 s38, s14, 3\ns_lshl_b32 s18, s3, 1\ns_add_u32 s38, s38, s18\ns_mul_i32 s38, s38, {TS}\ns_add_u32 s38, s38, {H2 + 144*1024}")
    A(f"v_add_u32 v{vH1}, {TS - 1024}, v{vLane16}")

    def s_dmaH():
        return [["s_add_u32 m0, s46, s43", f"buffer_load_dwordx4 v{vLane16}, s[24:27], s38 offen sc1 lds"],
                [f"buffer_load_dwordx4 v{vH1}, s[24:27], s38 offen offset:1024 sc1 lds", "s_add_u32 s38, s38, 1024"]]

    def s_dmaC():
        G = []
        for x in range(3):
            g = []
            if x == 0:
                g.append("s_add_u32 m0, s46, s44")
            g.append(f"buffer_load_dwordx4 v{vLane16}, s[24:27], s39 offen offset:{x*1024} sc1 lds")
            if x == 2:
                g.append("s_add_u32 s39, s39, 36864")
            G.append(g)
        return G
    for st in range(R3):
        A.emit_dma(s_dmaC())
        A(adv3)
    A(f"s_lshl_b32 s18, s17, 12\nv_add_u32 v{vRA}, s18, v{vLane16}\ns_mul_i32 s18, s16, 6144\ns_add_u32 s18, s18, 8192\nv_add_u32 v{vRB}, s18, v{vLane16}")
    for i in range(96):
        A(f"v_mov_b32 v{i}, 0")
    A(f"v_and_b32 v{t}, 31, v{lane}\nv_lshlrev_b32 v{t}, 7, v{t}\ns_lshr_b32 s18, s14, 1\ns_lshl_b32 s18, s18, 12\ns_add_u32 s18, s18, {F1}")
    A(f"v_and_b32 v{t+2}, 3, v{lane}\nv_lshlrev_b32 v{t+2}, 5, v{t+2}\ns_and_b32 s19, s14, 1\ns_add_u32 s19, s19, 30\ns_lshl_b32 s19, s19, 3\ns_lshr_b32 s34, s14, 1\ns_add_u32 s34, s34, s19\ns_lshl_b32 s34, s34, 7\ns_add_u32 s34, s34, {F2}")
    A.poll(t, t + 1, "s18")
    A.stamp(16)
    A(f"v_mov_b32 v{t}, {OOB}")
    for st in range(R3):
        A.emit_dma(s_dmaH())
        A(adv3)
        if 1 <= st <= R3 - 2:
            for _ in range(3):
                A(f"buffer_load_dword v222, v{t}, s[20:23], 0 offen")
    A(f"s_waitcnt vmcnt({2 + 5*(R3-2)})\ns_barrier")
    A.stamp(17)

    def s_reads(par):
        b = par * 40
        return [f"ds_read_b128 a[{b+4*tt}:{b+4*tt+3}], v{vRA} offset:{tt*1024}" for tt in range(4)] + \
               [f"ds_read_b128 a[{b+16+4*dr}:{b+19+4*dr}], v{vRB} offset:{dr*1024}" for dr in range(6)]

    def s_mf(par):
        b = par * 40
        M = []
        for dr in range(6):
            for tt in range(4):
                c = (tt * 6 + dr) * 4
                M.append(f"v_mfma_f32_16x16x32_bf16 v[{c}:{c+3}], a[{b+16+4*dr}:{b+19+4*dr}], a[{b+4*tt}:{b+4*tt+3}], v[{c}:{c+3}]")
        return M
    G3 = s_dmaH() + s_dmaC()
    G3[-1].append(adv3)
    ring_loop(A, "P2s_loop", 36, s_mf, s_reads, G3, [vRA, vRB], S3, R3, 5 * (R3 - 2), 2, hooks=[(32 - R3, "P2s_hook")], cut=[26])
    A.stamp(19)
    A(f"s_lshl_b32 s18, s14, 1\ns_add_u32 s18, s18, s17\ns_mul_i32 s18, s18, 144\ns_lshl_b32 s19, s15, 1\ns_add_u32 s19, s19, s16\ns_mul_i32 s19, s19, 6\ns_add_u32 s18, s18, s19\ns_lshl_b32 s18, s18, 10\ns_add_u32 s18, s18, {YY}")
    for tt in range(4):
        A("s_add_u32 s19, s18, 3072")
        for dr in range(6):
            c = (tt * 6 + dr) * 4
            A(f"buffer_store_dwordx4 v[{c}:{c+3}], v{vLane16}, s[20:23], s{18 + dr//3} offen offset:{(dr%3)*1024} sc1")
        A("s_add_u32 s18, s18, 36864")
    A("s_waitcnt vmcnt(0) lgkmcnt(0)")
    A.flag("s90", t + 4)
    A.stamp(20)
    A("s_endpgm")
    A("P2s_hook:")
    A.poll(t + 2, t + 3, "s34")
    A.stamp(18)
    A("s_branch P2s_hook_ret")

    A("P2_left:")
    S4, R4 = 16384, 8
    A("s_sub_u32 s18, s13, 30\ns_lshl_b32 s55, s12, 1\ns_add_u32 s55, s55, s18\ns_add_u32 s62, s3, 32")
    A(f"v_lshlrev_b32 v{t}, 5, v{lane}\ns_lshl_b32 s19, s55, 11\ns_add_u32 s19, s19, {F0}")
    A(f"s_mul_i32 s38, s12, 294912\ns_lshl_b32 s18, s18, 13\ns_add_u32 s38, s38, s18\ns_lshl_b32 s43, s3, 11\ns_add_u32 s38, s38, s43\ns_add_u32 s44, s43, 8192")
    A.srd(28, 8, 663552)
    A.srd(32, 10, 663552)
    A("s_mul_i32 s39, s62, 18432")
    vB0, vB1 = 160 + 4, 160 + 5
    bsrc(vB0, lane, t + 4)
    A(f"v_subrev_u32 v{vB1}, 1024, v{vB0}\ns_add_u32 s40, s39, 0")
    A.srd(76, 56, 1152)
    A.srd(80, 58, 1152)
    A.srd(84, 60, 1152)
    A(f"v_and_b32 v{t+4}, 15, v{lane}\ns_lshl_b32 s18, s62, 4\nv_add_lshl_u32 v{t+4}, v{t+4}, s18, 1")
    A(f"buffer_load_ushort v{cL}, v{t+4}, s[76:79], 0 offen\nbuffer_load_ushort v{cL+1}, v{t+4}, s[80:83], 0 offen\nbuffer_load_ushort v{cL+2}, v{t+4}, s[84:87], 0 offen")
    A.poll(t, t + 1, "s19")
    adv4 = f"s_add_u32 s46, s46, {S4}\ns_cmp_eq_u32 s46, {R4*S4}\ns_cselect_b32 s46, 0, s46"

    def l_dma():
        return [["s_add_u32 m0, s46, s43", f"buffer_load_dwordx4 v{vLane16}, s[24:27], s38 offen sc1 lds"],
                [f"buffer_load_dwordx4 v{vLane16}, s[24:27], s38 offen offset:1024 sc1 lds", "s_add_u32 s38, s38, 16384"],
                ["s_add_u32 m0, s46, s44", f"buffer_load_dwordx4 v{vB0}, s[28:31], s39 offen lds"],
                ["s_add_u32 m0, s46, s45", f"buffer_load_dwordx4 v{vB0}, s[32:35], s39 offen lds", "s_add_u32 s39, s39, 64", adv4]]
    A("s_add_u32 s45, s44, 1024")
    for st in range(R4):
        A.emit_dma(l_dma())
    ssm_consts(A, cL, cL + 1, cL + 2, t + 4)
    for i in range(32):
        A(f"v_mov_b32 v{RE+i}, 0\nv_mov_b32 v{IM+i}, 0")
    A(f"v_mov_b32 v{vRA}, v{vSw}\nv_add_u32 v{vRB}, s44, v{vSw}")
    A(f"s_waitcnt vmcnt({4*(R4-1)})\ns_barrier")
    A.stamp(24)

    def l_reads(par):
        b = par * 40
        return [f"ds_read_b128 a[{b+32+4*k}:{b+35+4*k}], v{vRB} offset:{k*1024}" for k in range(2)] + \
               [f"ds_read_b128 a[{b+4*m}:{b+4*m+3}], v{vRA} offset:{m*1024}" for m in range(8)]

    def l_mf(par):
        b = par * 40
        M = []
        for k in range(2):
            for m in range(8):
                c = (RE if k == 0 else IM) + 4 * m
                M.append(f"v_mfma_f32_16x16x32_bf16 v[{c}:{c+3}], a[{b+4*m}:{b+4*m+3}], a[{b+32+4*k}:{b+35+4*k}], v[{c}:{c+3}]")
        return M
    ring_loop(A, "P2l_loop", 18, l_mf, l_reads, l_dma(), [vRA, vRB], S4, R4, 4 * (R4 - 2), 2, cut=[26, 30, 34])
    A(f"s_mul_i32 s88, s55, {8*TS}\ns_add_u32 s88, s88, {H2}\ns_lshl_b32 s34, s3, 13\ns_add_u32 s34, s34, {R4*S4}\ns_nop 4")
    A.stamp(25)
    scan_pass1(A)
    scan_poll(A)
    scan_pass2(A, "s34")
    A("s_waitcnt vmcnt(0)")
    A.flag("s90", t + 4)
    A.stamp(26)
    A("L_end:\ns_endpgm")

    head = ("; S5 scan + bilinear GLU block, one persistent kernel: layernorm -> up projections + scan -> down projections + gate\n"
            "; @launch grid=(256,1,1) block=(256,1,1) lds=163840\n"
            '.amdgcn_target "amdgcn-amd-amdhsa--gfx950"\n')
    tail = ('.section .rodata,"a"\n.p2align 6\n'
            f".amdhsa_kernel {K}\n.amdhsa_next_free_vgpr 512\n.amdhsa_next_free_sgpr 102\n.amdhsa_accum_offset 256\n"
            ".amdhsa_group_segment_fixed_size 0\n.amdhsa_kernarg_size 128\n.amdhsa_user_sgpr_count 2\n"
            ".amdhsa_user_sgpr_kernarg_segment_ptr 1\n.amdhsa_system_sgpr_workgroup_id_x 1\n.end_amdhsa_kernel\n")
    return head + "\n".join(A.L) + "\n" + tail


if __name__ == "__main__":
    opts = {}
    path = f"cdna_kernels/{NAME}.s"
    for a in sys.argv[1:]:
        if a.startswith("out="):
            path = a[4:]
        else:
            k, _, v = a.partition("=")
            opts[k] = int(v) if v else 1
    open(path, "w").write(gen(opts))
    print("wrote", path)
```
